```python
import torch

def _softmax(x, axis=-1):
    return torch.softmax(x, dim=axis)
def _gelu(x):
    return torch.nn.functional.gelu(x, approximate="tanh")
def _silu(x):
    return torch.nn.functional.silu(x)
def _sigmoid(x):
    return torch.sigmoid(x)
def _layernorm(x, axis=-1, eps=1e-5):
    m = x.mean(dim=axis, keepdim=True)
    v = x.var(dim=axis, keepdim=True, unbiased=False)
    return (x - m) / torch.sqrt(v + eps)
def _scatter_add(tgt, idx, src, axis=0):
    return tgt.clone().index_add_(axis, idx, src)
def _segment_sum(src, seg, n):
    out = torch.zeros((n,) + src.shape[1:], dtype=src.dtype)
    return out.index_add_(0, seg, src)
def _pad(x, pw):
    flat = tuple(v for pair in reversed(pw) for v in pair)
    return torch.nn.functional.pad(x, flat)

kernel_name = 'gated_mix__spectral_gfnet__swiglu_ffn__prompt'

def setup_inputs():

    _w = (lambda a: (lambda t: t.to(torch.bfloat16) if t.is_floating_point() else t)(torch.as_tensor(a)))
    def _A_setup():
        B, S, D = 1, 2048, 448
        Df = D // 2 + 1
        return {
            "x": _w((lambda *s: torch.randn(*s, dtype=torch.bfloat16) * 0.05)(B, S, D)),
            "w_r": _w((lambda *s: torch.randn(*s, dtype=torch.bfloat16) * 0.8)(S, Df) * 0.02),
            "w_i": _w((lambda *s: torch.randn(*s, dtype=torch.bfloat16) * 0.8)(S, Df) * 0.02),
        }
    _A_in = _A_setup()

    def _B_setup():
        B, S, D, F = 1, 2048, 448, 1792
        return {
            "x": _w((lambda *s: torch.randn(*s, dtype=torch.bfloat16) * 0.05)(B, S, D)),
            "w_gate": _w((lambda *s: torch.randn(*s, dtype=torch.bfloat16) * 0.05)(D, F)),
            "w_up": _w((lambda *s: torch.randn(*s, dtype=torch.bfloat16) * 0.05)(D, F)),
            "w_down": _w((lambda *s: torch.randn(*s, dtype=torch.bfloat16) * 0.05)(F, D)),
        }
    _B_in = _B_setup()

    return {
        "A_x": _A_in["x"],
        "A_w_r": _A_in["w_r"],
        "A_w_i": _A_in["w_i"],
        "B_x": _B_in["x"],
        "B_w_gate": _B_in["w_gate"],
        "B_w_up": _B_in["w_up"],
        "B_w_down": _B_in["w_down"],
        "gate_w": _w((lambda *s: torch.randn(*s, dtype=torch.bfloat16) * 0.05)(448) * 16.0),
    }

def reference(A_x, A_w_r, A_w_i, B_x, B_w_gate, B_w_up, B_w_down, gate_w):
    def _A_ref(x, w_r, w_i):
        B, S, D = x.shape
        X = (lambda x, axes=(-2,-1): torch.fft.rfft2(x.float(), dim=axes))(x, axes=(-2, -1))
        W = w_r + 1j * w_i
        X = X * W
        y = (lambda x, s, axes=(-2,-1): torch.fft.irfft2(x, s=s, dim=axes).to(torch.bfloat16))(X, (S, D), axes=(-2, -1))
        return y

    def _B_ref(x, w_gate, w_up, w_down):
        g = _silu(x @ w_gate)
        u = x @ w_up
        return (g * u) @ w_down

    x = A_x
    g = _sigmoid((x * gate_w).sum(-1, keepdims=True))
    a = _A_ref(x, A_w_r, A_w_i)
    b = _B_ref(x, B_w_gate, B_w_up, B_w_down)
    return g * a + (1 - g) * b
```

```python
import re

TRANS = ("v_exp_f32", "v_log_f32", "v_rcp_f32", "v_rsq_f32", "v_sqrt_f32", "v_sin_f32", "v_cos_f32")

def regs_of(op):
    op = op.strip()
    if op.startswith("-"): op = op[1:]
    m = re.fullmatch(r"abs\((.*)\)|\|(.*)\|", op)
    if m: op = m.group(1) or m.group(2)
    m = re.fullmatch(r"([vas])\[(\d+):(\d+)\]", op)
    if m: return {(m.group(1), i) for i in range(int(m.group(2)), int(m.group(3)) + 1)}
    m = re.fullmatch(r"([vas])(\d+)", op)
    if m: return {(m.group(1), int(m.group(2)))}
    if op in ("vcc", "vcc_lo", "vcc_hi"): return {("s", "vcc")}
    if op in ("exec", "exec_lo", "exec_hi"): return {("s", "exec")}
    if op == "m0": return {("s", "m0")}
    return set()

class Ins:
    def __init__(self, text, tag=None):
        self.text = text.strip(); self.tag = tag
        self.label = self.text.endswith(":")
        t = self.text.split(";")[0].strip()
        parts = t.split(None, 1)
        self.op = parts[0] if parts else ""
        rest = parts[1] if len(parts) > 1 else ""
        ops = []
        depth = 0; cur = ""
        for ch in rest:
            if ch in "[(": depth += 1
            if ch in "])": depth -= 1
            if ch == "," and depth == 0: ops.append(cur); cur = ""
            else: cur += ch
        if cur.strip(): ops.append(cur)
        ops = [o.strip() for o in ops]
        self.mods = ""
        if ops:
            last = ops[-1].split(None, 1)
            ops[-1] = last[0]
            self.mods = last[1] if len(last) > 1 else ""
        self.ops = ops
        o = self.op
        R = [regs_of(x) for x in ops]
        U = lambda l: set().union(*l) if l else set()
        self.w = set(); self.r = set(); self.srcC = set(); self.srcAB = set(); self.sdata = set()
        self.cls = "other"; self.passes = 0
        if self.label or o.startswith("."):
            self.cls = "label"
        elif o.startswith("v_mfma"):
            self.cls = "mfma"; self.w = R[0]; self.srcAB = R[1] | R[2]; self.srcC = R[3]; self.r = self.srcAB | self.srcC
            self.passes = 8 if "32x32x16" in o else 4
        elif o.startswith("v_"):
            self.cls = "valu"
            if "permlane" in o: self.w = R[0] | R[1]; self.r = R[0] | R[1]
            elif o.startswith("v_fmac") or o.startswith("v_dot2c"): self.w = R[0]; self.r = U(R)
            elif "_co_" in o: self.w = R[0] | R[1]; self.r = U(R[2:])
            else: self.w = R[0]; self.r = U(R[1:])
            if o.startswith("v_cmpx"): self.w |= {("s", "exec")}
        elif o.startswith("buffer_load") or o.startswith("global_load"):
            self.cls = "vmem"
            if re.search(r"\blds\b", self.mods) or "_lds_" in o: self.r = U(R) | {("s", "m0")}
            else: self.w = R[0]; self.r = U(R[1:])
        elif o.startswith("buffer_store") or o.startswith("buffer_atomic"):
            self.cls = "vmem"; self.r = U(R)
            if "x4" in o or "x3" in o: self.sdata = R[0]
        elif o.startswith("buffer_"):
            self.cls = "vmem"
        elif o.startswith("ds_read"):
            self.cls = "ds"; self.w = R[0]; self.r = U(R[1:])
        elif o.startswith("ds_"):
            self.cls = "ds"; self.r = U(R)
        elif o.startswith("s_"):
            self.cls = "salu"
            if o.startswith("s_cmp") or o.startswith("s_cbranch") or o in ("s_branch", "s_nop", "s_waitcnt", "s_barrier", "s_sleep", "s_endpgm", "s_setprio"):
                self.r = U(R)
            else:
                self.w = R[0] if R else set(); self.r = U(R[1:])
                if "saveexec" in o: self.w |= {("s", "exec")}
    def states(self):
        if self.cls == "label": return 0
        if self.op == "s_nop": return int(self.ops[0], 0) + 1
        return 1

def need(p, c):
    n = 0
    vg = lambda s: {x for x in s if x[0] in "va"}
    sg = lambda s: {x for x in s if x[0] == "s"}
    if p.cls == "valu":
        pw = vg(p.w); ps = sg(p.w)
        if c.cls == "mfma" and pw & c.r: n = max(n, 2)
        if c.cls == "valu":
            if "permlane" in c.op and pw & c.r: n = max(n, 2)
            if ("dpp" in c.op or "quad_perm" in c.mods or "row_" in c.mods) and pw & c.r: n = max(n, 2)
            if c.op.startswith(("v_readfirstlane", "v_readlane")) and pw & c.r: n = max(n, 1)
            if p.op.startswith(TRANS) and pw & c.r: n = max(n, 1)
            if ps & c.r: n = max(n, 2)
            if c.op.startswith(("v_readlane", "v_writelane")) and ps & c.r: n = max(n, 4)
        if p.op.startswith(TRANS) and c.cls in ("vmem", "ds") and pw & c.r: n = max(n, 1)
        if c.cls == "vmem" and ps & c.r: n = max(n, 5)
        if c.cls == "salu" and ps & c.r: n = max(n, 1)
        if c.op.startswith("s_cbranch_vcc") and ("s", "vcc") in ps: n = max(n, 1)
        if ("s", "exec") in ps and c.cls in ("mfma", "valu"): n = max(n, 5)
    if p.cls == "mfma":
        big = {4: 8, 8: 12}[p.passes]
        if c.cls == "mfma":
            if p.w & c.srcAB: n = max(n, big)
            if p.w & c.srcC and not (p.w == c.srcC and p.passes == c.passes): n = max(n, big - 2)
            elif p.w & c.w and not (p.w == c.w and p.passes == c.passes): n = max(n, big - 2)
        elif c.cls in ("valu", "vmem", "ds"):
            if p.w & (c.r | c.w): n = max(n, big)
            if c.cls == "valu" and p.srcC & c.w: n = max(n, p.passes - 1)
    if p.cls == "salu":
        if ("s", "m0") in p.w and ("s", "m0") in c.r and c.cls in ("vmem", "ds"): n = max(n, 1)
    if p.cls == "vmem" and p.sdata and c.cls in ("valu", "mfma", "ds", "vmem") and p.sdata & c.w: n = max(n, 2)
    return n

class Wait:
    def __init__(self, vm=None, lg=None): self.vm = vm; self.lg = lg

class Prog:
    def __init__(self): self.items = []
    def __call__(self, text, tag=None):
        for line in text.split("\n"):
            if line.strip(): self.items.append(Ins(line, tag))
    def wait(self, vm=None, lg=None): self.items.append(Wait(vm, lg))
    def ext(self, items): self.items.extend(items.items if isinstance(items, Prog) else items)

def resolve(items):
    out = []
    vm = []; lg = []; vdone = 0; ldone = 0
    def idx(lst, tag):
        k = [i for i, t in enumerate(lst) if t == tag]
        assert k, f"wait on unknown tag {tag}"
        return k[-1] + 1
    for it in items:
        if isinstance(it, Wait):
            s = []
            if it.vm is not None:
                tgt = len(vm) if it.vm == 0 else idx(vm, it.vm)
                if tgt > vdone or it.vm == 0:
                    n = min(len(vm) - tgt, 63); s.append(f"vmcnt({n})"); vdone = max(vdone, len(vm) - n)
            if it.lg is not None:
                tgt = len(lg) if it.lg == 0 else idx(lg, it.lg)
                if tgt > ldone or it.lg == 0:
                    n = min(len(lg) - tgt, 15); s.append(f"lgkmcnt({n})"); ldone = max(ldone, len(lg) - n)
            if s: out.append(Ins("s_waitcnt " + " ".join(s)))
            continue
        if it.cls == "vmem": vm.append(it.tag)
        if it.cls == "ds": lg.append(it.tag)
        out.append(it)
    return out

def pad(items):
    out = []; nn = 0
    for c in items:
        req = 0; dist = 0
        for p in reversed(out):
            if dist >= 20: break
            n = need(p, c)
            if n > dist: req = max(req, n - dist)
            dist += p.states()
        if req:
            out.append(Ins(f"s_nop {req - 1}")); nn += req
        out.append(c)
    return out, nn

def check_loads(items):
    vm = []; lg = []
    for k, it in enumerate(items):
        if it.op == "s_waitcnt":
            m = re.search(r"vmcnt\((\d+)\)", it.text)
            if m: n = int(m.group(1)); vm = vm[len(vm) - n:] if n < len(vm) else vm; vm = vm if n else []
            m = re.search(r"lgkmcnt\((\d+)\)", it.text)
            if m: n = int(m.group(1)); lg = lg[len(lg) - n:] if n < len(lg) else lg; lg = lg if n else []
            continue
        for q, name in ((vm, "vm"), (lg, "lg")):
            for p in q:
                if p.w & (it.r | it.w):
                    raise AssertionError(f"unwaited {name} load: '{p.text}' used by '{it.text}' @{k}")
        if it.cls == "vmem": vm.append(it)
        if it.cls == "ds": lg.append(it)

def finish(prog):
    items = resolve(prog.items)
    check_loads(items)
    items, nn = pad(items)
    return items, nn

def text(items):
    return "\n".join(i.text if i.label else "    " + i.text for i in items)

def cost(it):
    if isinstance(it, Wait): return 1
    if it.cls == "label": return 0
    if it.op.startswith(TRANS): return 2
    return 1

class Filler:
    def __init__(self): self.q = []
    def add(self, prog_or_list, atomic=False):
        items = prog_or_list.items if isinstance(prog_or_list, Prog) else prog_or_list
        if atomic: self.q.append(list(items))
        else: self.q.extend([[i] for i in items])
    def take(self, P, budget):
        while self.q and budget > 0:
            g = self.q.pop(0)
            P.ext(g); budget -= sum(cost(i) for i in g)
    def flush(self, P): self.take(P, 10 ** 9)
    def __len__(self): return len(self.q)
```

```python
import sys, struct
from asmlib import *

KNAME = "gated_mix__spectral_gfnet__swiglu_ffn__prompt_kernel"
H_OFF = 0; U1_OFF = 0x700000; U2_OFF = 0x8C0000; GZ_OFF = 0xA80000
HF_OFF = 0xA90000; U1F_OFF = 0xA98000; U2F_OFF = 0xAA0000; EP_OFF = 0xAA2000
ST_OFF = 0xAB0000; WS_SIZE = 0xB00000
OOB = 0x7FFFFF00
def f2h(x): return "0x%08x" % struct.unpack("<I", struct.pack("<f", x))[0]
def vr(b, n=4): return f"v[{b}:{b+n-1}]"
def ar(b, n=4): return f"a[{b}:{b+n-1}]"
sX, sW, sD, sS, sO = "s[8:11]", "s[12:15]", "s[16:19]", "s[20:23]", "s[24:27]"
SPIN_MAX = 200000

class Cfg:
    stamps = False
    cyc = False
    rot = True
    x_first = 10
    pub_chunk = 1
    D = 3
    fill = 3
    force_nonlocal = False

class Gen:
    def __init__(self, cfg):
        self.c = cfg; self.ool = []; self.nst = 0; self.stn = {}
    def srd(self, P, base, lo, size):
        P(f"s_mov_b32 s{base}, s{lo}\ns_and_b32 s{base+1}, s{lo+1}, 0xffff\ns_mov_b32 s{base+2}, {size}\ns_mov_b32 s{base+3}, 0x20000")
    def stamp(self, P, path, name):
        if not self.c.stamps: return
        l = self.stn.setdefault(path, ["entry"])
        k = len(l); l.append(name); assert k < 18
        P(f"s_mem{'time' if self.c.cyc else 'realtime'} s[{98-2*k}:{99-2*k}]")
    def dump_stamps(self, P, path):
        if not self.c.stamps: return
        P("s_waitcnt lgkmcnt(0)")
        P(f"s_lshl_b32 s3, s2, 2\ns_add_u32 s3, s3, s28\ns_lshl_b32 s3, s3, 7\ns_add_u32 s3, s3, {ST_OFF}")
        P("v_mov_b32 v1, 0\ns_mov_b64 exec, 1")
        for k in range(len(self.stn[path])):
            P(f"v_mov_b32 v2, s{98-2*k}\nbuffer_store_dword v2, v1, {sS}, s3 offen offset:{4*k}\ns_nop 1")
    def check(self, P, name, load, cmpreg, tagreg=30):
        P(f"v_cmp_ne_u32 s[36:37], v{tagreg}, v{cmpreg}\ns_cmp_lg_u64 s[36:37], 0\ns_cbranch_scc1 SPIN_{name}\nBACK_{name}:")
        self.ool.append(f"""SPIN_{name}:
    s_mov_b32 s38, 0
LOOP_{name}:
    s_sleep 2
    {load}
    s_add_u32 s38, s38, 1
    s_waitcnt vmcnt(0)
    v_cmp_ne_u32 s[36:37], v{tagreg}, v{cmpreg}
    s_nop 1
    s_cmp_eq_u64 s[36:37], 0
    s_cbranch_scc1 BACK_{name}
    s_cmp_lt_u32 s38, {SPIN_MAX}
    s_cbranch_scc1 LOOP_{name}
    s_endpgm""")
    def lstore(self, P, txt, tag=None):
        k = self.nst; self.nst += 1
        P(f"s_cbranch_vccnz GST_{k}")
        P(txt, tag)
        P(f"GBK_{k}:")
        self.ool.append(f"GST_{k}:\n    s_nop 1\n    {txt} sc1\n    s_branch GBK_{k}")

    def prologue(self):
        P = Prog()
        if self.c.stamps: P(f"s_mem{'time' if self.c.cyc else 'realtime'} s[98:99]")
        P("""s_cmp_ge_u32 s2, 256
s_cbranch_scc1 L_exit
s_load_dwordx16 s[64:79], s[0:1], 0
s_load_dwordx2 s[80:81], s[0:1], 64
s_load_dwordx2 s[82:83], s[0:1], 80
v_lshrrev_b32 v1, 6, v0
v_and_b32 v0, 63, v0
s_and_b32 s33, s2, 7
v_readfirstlane_b32 s28, v1
s_lshr_b32 s34, s2, 3
s_getreg_b32 s35, hwreg(HW_REG_XCC_ID)
v_lshlrev_b32 v32, 4, v0
v_mov_b32 v31, s35
s_cmp_ge_u32 s34, 28
s_cbranch_scc1 L_spare""")
        return P
    def tag(self, P):
        P(f"s_mov_b32 s3, 0x9E3779B1\nv_mul_lo_u32 v30, v30, s3\nv_add_u32 v30, 0x7F4A7C15, v30")

    def main(self):
        c = self.c; P = Prog(); st = lambda n: self.stamp(P, "main", n)
        XD, XR, XP, WD, WR, DD, DRL, DRH = 4, 8, 12, 16, 20, 24, 26, 28
        T = 33; FR = 48; FI = 72; ACC = 128
        C1, C2, R32, X1O, U1O = 72, 88, 104, 112, 120
        RING = 98304; FST = 131072
        XA = lambda tile, ks: (tile * 28 + ks) * 4
        P("""s_and_b32 s29, s34, 1
s_lshl_b32 s33, s33, 1
s_add_u32 s29, s29, s33
s_lshr_b32 s30, s34, 1
s_cmp_ge_u32 s30, 7
s_cselect_b32 s39, 1, 0
s_mul_i32 s32, s39, 7
s_sub_u32 s32, s30, s32""")
        if c.rot:
            P("""s_add_u32 s31, s29, s30
s_mul_i32 s33, s31, 37
s_lshr_b32 s33, s33, 8
s_mul_i32 s33, s33, 7
s_sub_u32 s31, s31, s33""")
        else: P("s_mov_b32 s31, 0")
        P(f"""v_lshrrev_b32 v1, 3, v0
v_and_b32 v2, 7, v0
v_lshrrev_b32 v3, 4, v0
v_xor_b32 v3, v2, v3
v_mul_u32_u24 v{T}, 57344, v1
s_lshl_b32 s33, s29, 2
s_add_u32 s61, s33, s28
s_mul_i32 s33, s61, 896
v_add_u32 v{T}, s33, v{T}
v_lshl_add_u32 v{XD}, v3, 4, v{T}
v_xor_b32 v3, 4, v3
v_lshl_add_u32 v{XD+1}, v3, 4, v{T}
v_add_u32 v{XD+2}, {2*(8*57344-1024)}, v{XD}
v_add_u32 v{XD+3}, {3*(8*57344-1024)}, v{XD+1}
v_add_u32 v{XD+1}, {8*57344-1024}, v{XD+1}
s_mul_i32 s62, s28, 28672
s_mov_b32 s33, s31""")
        for i in range(7):
            P(f"s_lshl_b32 s{54+i}, s33, 7")
            if i < 6: P("s_add_u32 s33, s33, 1\ns_cmp_eq_u32 s33, 7\ns_cselect_b32 s33, 0, s33")
        P(f"v_mov_b32 v{T}, {EP_OFF}")
        P("s_waitcnt lgkmcnt(0)")
        self.srd(P, 8, 64, 1835008)
        self.srd(P, 20, 82, WS_SIZE)
        def xload(n):
            Q = Prog(); sl, i = divmod(n, 4)
            if i == 0: Q(f"s_add_u32 m0, s62, {sl*4096}")
            Q(f"buffer_load_dwordx4 v{XD+i}, {sX}, s{54+sl} offen offset:{1024*i} lds", f"x{sl}")
            return Q
        nx = 0
        for n in range(c.x_first):
            P.ext(xload(n)); nx += 1
            if n == 3: P(f"buffer_load_dword v30, v{T}, {sS}, 0 offen sc1", "ep")
        st("xissued")
        P("s_and_b32 s33, s28, 1\ns_cmp_eq_u32 s33, 1\ns_cselect_b32 s72, s74, s72\ns_cselect_b32 s73, s75, s73")
        self.srd(P, 12, 72, 1605632)
        self.srd(P, 16, 76, 1605632)
        self.srd(P, 24, 80, 1835008)
        STEP, PHI, D0, A0 = T, T+1, T+2, T+3
        P(f"""v_bfe_u32 v1, v0, 3, 2
v_and_b32 v2, 3, v0
v_lshl_add_u32 v1, v1, 2, v2
s_mul_i32 s33, s39, 112
s_add_u32 s33, s33, s32
v_mad_u32_u24 v1, v1, 7, s33
v_bfe_u32 v2, v0, 2, 1
v_lshl_add_u32 v3, v1, 1, v2
v_cmp_eq_u32 vcc, 1, v3
v_mov_b32 v3, 224
v_cndmask_b32 v1, v1, v3, vcc
v_cndmask_b32 v2, v2, 0, vcc
v_cvt_f32_u32 v1, v1
v_cvt_f32_u32 v2, v2
v_mul_f32 v{STEP}, {f2h(1/448)}, v1
v_mul_f32 v{PHI}, {f2h(0.25)}, v2
v_lshrrev_b32 v1, 5, v0
s_mul_i32 s33, s28, 112
s_lshl_b32 s3, s31, 6
s_add_u32 s33, s33, s3
v_lshl_add_u32 v1, v1, 3, s33
v_cvt_f32_u32 v{D0}, v1
s_mul_i32 s33, s28, 7168
s_add_u32 s33, s33, {FST}
v_add_u32 v3, s33, v32""")
        for i in range(7):
            o = FR + 4 * (i & 1)
            P(f"v_mul_f32 v{A0}, v{D0}, v{STEP}\nv_fract_f32 v{A0}, v{A0}\nv_add_f32 v{A0}, v{A0}, v{PHI}")
            if i < 6: P(f"v_add_f32 v{D0}, {f2h(16.0)}, v{D0}")
            for e in range(1, 8): P(f"v_fmamk_f32 v{A0+e}, v{STEP}, {f2h(float(e))}, v{A0}")
            for e in range(8): P(f"v_cos_f32 v{A0+e}, v{A0+e}")
            for e in range(4): P(f"v_cvt_pk_bf16_f32 v{o+e}, v{A0+2*e}, v{A0+2*e+1}")
            P(f"ds_write_b128 v3, {vr(o)} offset:{1024*i}")
        P.wait(lg=0); P("s_barrier")
        st("Fgen")
        P(f"v_add_u32 v3, {FST}, v32")
        for ks in range(28): P(f"ds_read_b128 {vr(ACC+4*ks)}, v3 offset:{1024*ks}")
        P(f"""v_and_b32 v1, 31, v0
v_cmp_eq_u32 vcc, 1, v1
v_and_b32 v2, 1, v1
v_lshrrev_b32 v1, 1, v1
v_cndmask_b32 v1, v1, 16, vcc
v_cndmask_b32 v2, v2, 0, vcc
v_cvt_f32_u32 v1, v1
v_cvt_f32_u32 v2, v2
v_mul_f32 v{STEP}, {f2h(1/32)}, v1
v_mul_f32 v{PHI}, {f2h(0.25)}, v2
v_lshrrev_b32 v1, 5, v0
v_lshlrev_b32 v1, 2, v1
v_cvt_f32_u32 v1, v1
v_fma_f32 v{PHI}, v1, v{STEP}, v{PHI}""")
        for u in range(2):
            for e in range(8): P(f"v_fmamk_f32 v{A0+e}, v{STEP}, {f2h(float(16*u+8*(e>>2)+(e&3)))}, v{PHI}")
            for e in range(8): P(f"v_cos_f32 v{A0+e}, v{A0+e}")
            for e in range(4): P(f"v_cvt_pk_bf16_f32 v{R32+4*u+e}, v{A0+2*e}, v{A0+2*e+1}")
        P(f"""v_and_b32 v1, 31, v0
v_lshrrev_b32 v2, 5, v0
v_bfe_u32 v3, v0, 1, 3
v_xor_b32 v2, v2, v3
v_lshlrev_b32 v1, 7, v1
s_xor_b32 s33, s28, 1
s_mul_i32 s33, s33, 28672""")
        for k in range(4):
            P(f"v_xor_b32 v3, {2*k}, v2\nv_lshl_add_u32 v3, v3, 4, v1\nv_add_u32 v{XR+k}, s62, v3\nv_add_u32 v{XP+k}, s33, v3")
        P(f"""v_lshrrev_b32 v1, 3, v0
v_and_b32 v2, 7, v0
v_and_b32 v3, 2, v1
v_xor_b32 v{T}, v2, v3
s_and_b32 s33, s28, 1
s_lshl_b32 s3, s33, 2
v_xor_b32 v{T}, s3, v{T}
v_mul_u32_u24 v{T+1}, 3584, v1
v_lshl_add_u32 v{T}, v{T}, 4, v{T+1}
s_lshr_b32 s63, s28, 1
s_lshl_b32 s3, s30, 1
s_add_u32 s3, s3, s63
s_lshl_b32 s3, s3, 7
v_add_u32 v{WD}, s3, v{T}
v_add_u32 v{WD+1}, {28672-1024}, v{WD}
v_add_u32 v{WD+2}, {2*(28672-1024)}, v{WD}
v_add_u32 v{WD+3}, {3*(28672-1024)}, v{WD}
v_lshlrev_b32 v3, 1, v3
v_xor_b32 v2, v2, v3
v_mul_u32_u24 v1, 896, v1
v_lshl_add_u32 v1, v2, 4, v1
s_lshl_b32 s3, s63, 2
s_add_u32 s4, s3, s33
s_mul_i32 s3, s4, 14336
s_lshl_b32 s5, s32, 7
s_add_u32 s3, s3, s5
v_add_u32 v{DD}, s3, v1
v_add_u32 v{DD+1}, {8*896-1024}, v{DD}""")
        P(f"""v_bfe_u32 v1, v0, 4, 1
v_lshrrev_b32 v2, 5, v0
v_bfe_u32 v3, v0, 2, 2
v_lshl_add_u32 v{T}, v2, 3, v3
v_lshlrev_b32 v{T}, 7, v{T}
v_lshl_add_u32 v{T}, v1, 12, v{T}
v_and_b32 v{T+1}, 3, v0
v_lshl_add_u32 v{T}, v{T+1}, 3, v{T}
s_lshl_b32 s3, s33, 13
s_add_u32 s3, s3, {RING}
v_add_u32 v{T}, s3, v{T}
v_bfe_u32 v{T+2}, v0, 3, 1
v_lshl_add_u32 v{T+3}, v1, 1, v{T+2}""")
        for t in range(4):
            P(f"v_xor_b32 v{T+4}, {t}, v{T+3}\nv_lshl_add_u32 v{WR+t}, v{T+4}, 5, v{T}")
        P(f"""v_lshl_add_u32 v2, v2, 2, v3
v_lshlrev_b32 v2, 7, v2
v_lshl_add_u32 v2, v1, 5, v2
v_and_b32 v1, 1, v0
v_lshl_add_u32 v2, v1, 4, v2
v_bfe_u32 v1, v0, 1, 1
v_lshl_add_u32 v2, v1, 3, v2
v_xor_b32 v{T+2}, s33, v{T+2}
v_lshl_add_u32 v2, v{T+2}, 6, v2
v_xor_b32 v3, 64, v2
s_mul_i32 s5, s28, 24576
s_lshl_b32 s6, s28, 12
s_add_u32 s6, s6, {RING}
v_add_u32 v{DRL}, s5, v2
v_add_u32 v{DRL+1}, s5, v3
v_add_u32 v{DRH}, s6, v2
v_add_u32 v{DRH+1}, s6, v3""")
        for i in range(7):
            P(f"s_mul_i32 s{40+2*i}, s{54+i}, 1792\ns_add_u32 s{41+2*i}, s{40+2*i}, {32*3584}")
        P.wait(lg=0); P("s_barrier")
        st("setup")
        def wload(ch):
            Q = Prog()
            Q(f"s_add_u32 m0, s6, {((ch+1)&3)*16384}")
            for i in range(4): Q(f"buffer_load_dwordx4 v{WD+i}, {sW}, s{40+ch} offen offset:{1024*i} lds", f"w{ch}")
            return Q
        def dloc(i):
            if i < 12: return True, i * 2048
            if i >= 20: return True, (i - 20) * 2048
            chn = 10 + (i - 12) // 2
            return False, ((chn + 1) & 3) * 16384 + (i & 1) * 2048
        def ksoff(i): return (i % 14) * 8 + 2 * (i // 14)
        def dload(i):
            Q = Prog(); low, off = dloc(i)
            Q(f"s_add_u32 m0, s{5 if low else 6}, {off}\ns_mov_b32 s7, {ksoff(i)*14336}")
            for k in range(2): Q(f"buffer_load_dwordx4 v{DD+k}, {sD}, s7 offen offset:{1024*k} lds", f"d{i}")
            return Q
        def dread(i, dst):
            Q = Prog(); low, off = dloc(i)
            for ms in range(2):
                for rr in range(2):
                    Q(f"ds_read_b64_tr_b16 {dst(4*ms+2*rr)}, v{(DRL if low else DRH)+ms} offset:{off+1024*rr}", f"dr{i}")
            return Q
        LQ = Filler()
        for n in range(nx, 28): LQ.add(xload(n), atomic=True)
        for ch in range(3):
            it = wload(ch).items
            LQ.add(it[:2], atomic=True)
            for x in it[2:]: LQ.add([x], atomic=True)
        def lq(n):
            for _ in range(n):
                if len(LQ): P.ext(LQ.q.pop(0))
        lq(2)
        for sl in range(7):
            P.wait(vm=f"x{sl}"); P("s_barrier")
            if sl == 0: st("x0")
            for k in range(4):
                P(f"ds_read_b128 {ar(XA(0,4*sl+k))}, v{XR+k} offset:{4096*sl}", f"xr{4*sl+k}")
                lq(1)
            for k in range(4):
                ks = 4 * sl + k
                P(f"ds_read_b128 {ar(XA(1,ks))}, v{XP+k} offset:{4096*sl}", f"xp{ks}")
            for k in range(4):
                ks = 4 * sl + k
                P.wait(lg=f"xr{ks}")
                P(f"v_mfma_f32_32x32x16_bf16 {vr(C1,16)}, {ar(XA(0,ks))}, {vr(ACC+4*ks)}, {vr(C1,16) if ks else 0}")
            if sl == 1: self.tag(P)
        lq(99)
        P.wait(vm="w0", lg=0); P("s_barrier")
        st("Xdone")
        FQ = Filler()
        Q = Prog()
        UA, UF = T + 12, T + 13
        Q(f"""v_bfe_u32 v1, v0, 1, 3
v_mul_u32_u24 v1, {14*8192}, v1
v_and_b32 v2, 1, v0
v_lshl_add_u32 v1, v2, 6, v1
v_lshrrev_b32 v2, 4, v0
v_lshl_add_u32 v1, v2, 4, v1
s_lshl_b32 s3, s30, 13
s_lshl_b32 s34, s61, 7
s_add_u32 s3, s3, s34
v_add_u32 v{UA}, s3, v1""")
        for e in range(8): Q(f"v_cvt_pk_bf16_f32 v{X1O+e}, v{C1+2*e}, v{C1+2*e+1}")
        Q(f"v_mfma_f32_32x32x16_bf16 {vr(C2,16)}, {vr(X1O)}, {vr(R32)}, 0")
        Q(f"v_mfma_f32_32x32x16_bf16 {vr(C2,16)}, {vr(X1O+4)}, {vr(R32+4)}, {vr(C2,16)}")
        Q(f"""s_mul_i32 s3, s29, 14
s_add_u32 s3, s3, s30
s_lshl_b32 s3, s3, 7
s_add_u32 s3, s3, {U1F_OFF}
s_cmp_eq_u32 s28, 0
s_cselect_b32 s3, s3, {OOB}
v_mov_b32 v1, s3
v_mov_b32 v2, {OOB}
v_cmp_eq_u32 s[36:37], 0, v0
s_mov_b32 s54, {U1_OFF}
s_mov_b32 s55, {U1_OFF + 8*14*8192}
v_cndmask_b32 v{UF}, v2, v1, s[36:37]""")
        for e in range(8): Q(f"v_cvt_pk_bf16_f32 v{U1O+e}, v{C2+2*e}, v{C2+2*e+1}")
        for e in range(4): Q(f"v_permlane16_swap_b32 v{U1O+e}, v{U1O+4+e}")
        Q(f"buffer_store_dwordx4 {vr(U1O)}, v{UA}, {sS}, s54 offen sc1", "u1s")
        Q(f"buffer_store_dwordx4 {vr(U1O+4)}, v{UA}, {sS}, s55 offen sc1", "u1s")
        FQ.add(Q)
        n_p1 = len(FQ)
        Q = Prog()
        SD, S7, KD, SG, AN = T, T + 2, T + 4, T + 5, 4
        Q(f"""v_and_b32 v1, 19, v0
v_bfe_u32 v2, v0, 2, 1
v_lshl_add_u32 v1, v2, 3, v1
v_bfe_u32 v2, v0, 3, 1
v_lshl_add_u32 v1, v2, 2, v1
s_lshl_b32 s3, s32, 1
s_add_u32 s3, s3, s33
s_lshl_b32 s3, s3, 5
v_add_u32 v1, s3, v1
v_xor_b32 v2, 32, v1
v_cvt_f32_u32 v1, v1
v_cvt_f32_u32 v2, v2
v_mul_f32 v{SD}, {f2h(1/448)}, v1
v_mul_f32 v{SD+1}, {f2h(1/448)}, v2
v_mul_f32 v{S7}, {f2h(1/64)}, v1
v_mul_f32 v{S7+1}, {f2h(1/64)}, v2
s_mul_i32 s3, s63, 112
s_mul_i32 s56, s33, 59
s_add_u32 s3, s3, s56
v_lshrrev_b32 v1, 5, v0
v_mad_u32_u24 v1, v1, 28, s3
v_cvt_f32_u32 v{KD}, v1
s_cmp_eq_u32 s33, 0
s_cselect_b32 s56, {f2h(56.0)}, {f2h(-55.0)}""".replace(f"s_cselect_b32 s56, {f2h(56.0)}, {f2h(-55.0)}", f"s_mov_b32 s57, {f2h(-55.0)}\ns_cselect_b32 s56, {f2h(56.0)}, s57\ns_cselect_b32 s57, s57, {f2h(56.0)}"))
        Q(f"""v_lshlrev_b32 v1, 31, v0
v_xor_b32 v{SG}, {f2h(-1.0)}, v1
s_cmp_eq_u32 s28, 0
s_cselect_b32 s58, -1, 0
s_mov_b32 s59, 0""")
        grp = Q.items
        def add_scc_safe(items):
            i = 0
            while i < len(items):
                j = i + 1
                if items[i].op.startswith("s_cmp"):
                    while j < len(items) and items[j].op.startswith("s_") and not items[j].op.startswith("s_cmp"): j += 1
                FQ.add(items[i:j], atomic=True); i = j
        p1 = [g[0] for g in FQ.q]; FQ.q = []
        add_scc_safe(p1); n_p1 = len(FQ)
        add_scc_safe(grp)
        Q = Prog()
        for u in range(7):
            for ms in range(2):
                o = FI + (u * 2 + ms) * 4
                Q(f"""v_mul_f32 v{AN}, v{KD}, v{SD+ms}
v_add_f32 v{AN+1}, v{AN}, v{S7+ms}
v_fma_f32 v{AN+2}, 2.0, v{S7+ms}, v{AN}
v_add_f32 v{AN+3}, v{AN+2}, v{S7+ms}""")
                for e in range(4): Q(f"v_cos_f32 v{8+e}, v{AN+e}\nv_sin_f32 v{12+e}, v{AN+e}")
                if u == 0: Q(f"v_cndmask_b32 v12, v12, v{SG}, s[58:59]")
                Q(f"""v_cvt_pk_bf16_f32 v{o}, v8, v9
v_cvt_pk_bf16_f32 v{o+1}, v10, v11
v_cvt_pk_bf16_f32 v{o+2}, -v12, -v13
v_cvt_pk_bf16_f32 v{o+3}, -v14, -v15""")
            if u < 6: Q(f"v_add_f32 v{KD}, s{56+(u&1)}, v{KD}")
        FQ.add(Q)
        HV, UV, GV, HFA, HFS, U2FA, LCA = T + 6, T + 8, T + 9, T + 10, T + 11, T + 12, T + 14
        Q = Prog()
        Q(f"""s_lshl_b32 s60, s29, 1
s_add_u32 s3, s60, s63
s_mul_i32 s3, s3, 229376
s_lshl_b32 s34, s30, 1
s_add_u32 s34, s34, s33
s_lshl_b32 s34, s34, 13
s_add_u32 s3, s3, s34
s_lshl_b32 s34, s33, 10
s_add_u32 s54, s3, s34
s_xor_b32 s55, s54, 1024
s_add_u32 s56, s54, 4096
s_add_u32 s57, s55, 4096
s_add_u32 s60, s60, s39
s_mul_i32 s3, s60, 229376
s_lshl_b32 s34, s4, 11
s_add_u32 s3, s3, s34
s_lshl_b32 s34, s63, 10
s_add_u32 s3, s3, s34
v_add_u32 v{HV}, s3, v32
v_xor_b32 v{HV+1}, 1024, v{HV}
v_and_b32 v1, 31, v0
s_lshl_b32 s3, s63, 1
v_xor_b32 v2, s3, v1
v_lshrrev_b32 v3, 5, v0
v_lshlrev_b32 v3, 4, v3
v_lshl_add_u32 v2, v2, 5, v3
s_mul_i32 s3, s60, 57344
s_mul_i32 s34, s28, 14336
s_add_u32 s3, s3, s34
s_add_u32 s3, s3, {U2_OFF}
v_add_u32 v{UV}, s3, v2
s_lshl_b32 s3, s60, 9
s_lshl_b32 s34, s63, 7
s_add_u32 s3, s3, s34
s_add_u32 s3, s3, {GZ_OFF}
v_lshl_add_u32 v{GV}, v1, 2, s3
v_min_u32 v1, 13, v0
s_lshl_b32 s3, s60, 1
s_add_u32 s3, s3, s63
s_lshl_b32 s3, s3, 8
s_add_u32 s3, s3, {HF_OFF}
v_lshl_add_u32 v{HFA}, v1, 2, s3
s_lshl_b32 s3, s61, 8
s_lshl_b32 s34, s30, 2
s_add_u32 s3, s3, s34
s_add_u32 s3, s3, {HF_OFF}
v_mov_b32 v2, s3
v_mov_b32 v3, {OOB}
v_cmp_eq_u32 s[36:37], 0, v0
s_mul_i32 s3, s29, {14*128}
s_add_u32 s3, s3, {U1F_OFF}
v_cndmask_b32 v{HFS}, v3, v2, s[36:37]
v_lshl_add_u32 v{LCA}, v1, 7, s3
v_lshl_add_u32 v1, v0, 1, s63
v_mov_b32 v2, s60
v_cmp_gt_u32 s[36:37], 16, v0
s_mov_b32 s3, {U2F_OFF}
s_nop 0
v_cndmask_b32 v1, v2, v1, s[36:37]
v_lshl_add_u32 v{U2FA}, v1, 7, s3""")
        FQ.add(Q)
        D = c.D; NB = 6
        def wread(q):
            Q = Prog(); ks, t = divmod(q, 4); ch = ks >> 1
            for rr in range(2):
                Q(f"ds_read_b64_tr_b16 {vr(FR+4*(q%NB)+2*rr,2)}, v{WR+t} offset:{((ch+1)&3)*16384+(ks&1)*2048+512*rr}", f"wr{q}")
            return Q
        sched = {k: [] for k in range(-1, 14)}
        def split(Q, first):
            it = Q.items
            return [it[:first]] + [[x] for x in it[first:]]
        dn = 0
        for k in range(-1, 10):
            g = [wload(k + 4).items]
            nd = (12 * (k + 2)) // 11 - dn
            for _ in range(nd): g.append(dload(dn).items); dn += 1
            sched[k] = g
        sched[10] = [dload(i).items for i in (12, 13, 20)]
        sched[11] = [dload(i).items for i in (14, 15, 21)]
        sched[12] = [dload(i).items for i in (16, 17, 22)]
        late = [dload(i).items for i in (18, 19, 23, 24, 25, 26, 27)]
        MQ = []
        def mq_fill(k):
            for g in sched[k]:
                pre = [x for x in g if x.cls != "vmem"]; vs = [x for x in g if x.cls == "vmem"]
                MQ.append(pre + vs[:1])
                for x in vs[1:]: MQ.append([x])
        for q in range(D): P.ext(wread(q))
        mq_fill(-1)
        slot = 0
        for q in range(112):
            ks, t = divmod(q, 4)
            P.wait(lg=f"wr{q}")
            for s in range(2):
                a = ACC + (2 * t + s) * 16
                P(f"v_mfma_f32_32x32x16_bf16 {vr(a,16)}, {vr(FR+4*(q%NB))}, {ar(XA(s,ks))}, {vr(a,16) if ks else 0}")
                bud = c.fill
                if s == 0:
                    qn = q + D
                    if qn % 8 == 0:
                        k = qn // 8 - 1
                        while MQ: P.ext(MQ.pop(0))
                        if k == c.pub_chunk:
                            assert sum(1 for x in P.items if getattr(x, "tag", None) == "u1s") == 2
                            P.wait(vm="u1s")
                        P.wait(vm=f"w{k+1}" if k < 13 else None, lg=0); P("s_barrier")
                        if k == c.pub_chunk: P(f"buffer_store_dwordx2 v[30:31], v{UF}, {sS}, 0 offen sc1")
                        if k == 9:
                            FQ.flush(P)
                            P(f"buffer_load_dwordx2 v[2:3], v{LCA}, {sS}, 0 offen sc1", "lc")
                        if k == 8:
                            Q = Prog(); Q.wait(vm="d7")
                            for i in range(8): Q.ext(dread(i, lambda r, i=i: ar(8*i+r, 2)))
                            FQ.q = [[x] for x in Q.items] + FQ.q
                        if k == 12:
                            P.wait(vm="lc")
                            self.check(P, "lc", f"buffer_load_dwordx2 v[2:3], v{LCA}, {sS}, 0 offen sc1", 2)
                            P("v_cmp_ne_u32 vcc, v31, v3" if not c.force_nonlocal else "v_cmp_eq_u32 vcc, v31, v31")
                        if k in (3, 7, 11): st(f"c{k}")
                        if k < 13: mq_fill(k)
                        slot = 0
                    if qn < 112: P.ext(wread(qn))
                    bud -= 1
                elif MQ and (slot % 2 == 1):
                    g = MQ.pop(0); P.ext(g); bud -= len(g) - 1
                slot += 1
                if q < 6: bud += 2
                FQ.take(P, bud)
        FQ.flush(P)
        st("Adone")
        LT = Filler()
        for g in late: LT.add(g, atomic=True)
        E = 16
        for t in range(4):
            for s in range(2):
                a = ACC + (2 * t + s) * 16; o = 4 + 4 * ((2 * t + s) % 3)
                for e in range(8): P(f"v_mul_f32 v{E+e}, {f2h(-1.4426950408889634)}, v{a+e}")
                for e in range(8): P(f"v_exp_f32 v{E+e}, v{E+e}")
                LT.take(P, 1)
                for e in range(8): P(f"v_add_f32 v{E+e}, 1.0, v{E+e}")
                for e in range(8): P(f"v_rcp_f32 v{E+e}, v{E+e}")
                for e in range(8): P(f"v_mul_f32 v{a+e}, v{a+e}, v{a+8+e}")
                if (t, s) == (3, 0):
                    P.wait(vm="hs1"); self.lstore(P, f"buffer_store_dword v30, v{HFS}, {sS}, 0 offen")
                for e in range(8): P(f"v_mul_f32 v{a+e}, v{a+e}, v{E+e}")
                for e in range(4): P(f"v_cvt_pk_bf16_f32 v{o+e}, v{a+2*e}, v{a+2*e+1}")
                self.lstore(P, f"buffer_store_dwordx4 {vr(o)}, v32, {sS}, s{54+s+2*(t>>1)} offen offset:{2048*(t&1)}", f"hs{t}")
        LT.flush(P)
        st("epi")
        hf = lambda half: f"buffer_load_dword v1, v{HFA}, {sS}, 0 offen offset:{128*half} sc1"
        P(hf(0), "hf0")
        RB = 192; RS = 4
        P(f"""v_and_b32 v2, 31, v0
v_cvt_f32_u32 v2, v2
v_mul_f32 v2, {f2h(1/32)}, v2
v_lshrrev_b32 v3, 5, v0
v_cvt_f32_u32 v3, v3
v_mul_f32 v3, v3, v2
s_mov_b32 s58, -1""")
        for k in range(8): P(f"v_fmamk_f32 v{RB+2*k+1}, v2, {f2h(2.0*k)}, v3")
        for k in range(8): P(f"v_cos_f32 v{RB+2*k}, v{RB+2*k+1}\nv_sin_f32 v{RB+2*k+1}, v{RB+2*k+1}")
        P(f"v_cndmask_b32 v{RB+1}, v{RB+1}, v{SG}, s[58:59]")
        P.wait(vm="hf0")
        self.lstore(P, f"buffer_store_dword v30, v{HFS}, {sS}, 0 offen offset:128")
        self.check(P, "hf0", hf(0), 1)
        st("hf0")
        HR = lambda i, ns: 64 + (i % 16) * 8 + 4 * ns
        UR = lambda u, t: 192 + (2 * u + t) * 4
        EZ = 20; OMG = 22
        def hload(i):
            Q = Prog(); Q(f"s_mov_b32 s7, {ksoff(i)*2048}")
            for ns in range(2): Q(f"buffer_load_dwordx4 {ar(HR(i,ns))}, v{HV+ns}, {sS}, s7 offen sc1", f"h{i}")
            return Q
        u2f = f"buffer_load_dword v2, v{U2FA}, {sS}, 0 offen sc1"
        BQ = []
        for i in range(28):
            Q = Prog()
            if i == 10: Q(hf(1), "hf1")
            if i == 14: Q.wait(vm="hf1"); self.check(Q, "hf1", hf(1), 1)
            if i == 24: Q(u2f, "u2f")
            Q.ext(hload(i)); BQ.append(Q)
        Q = Prog(); Q.wait(vm="u2f"); self.check(Q, "u2f", u2f, 2)
        Q(f"v_xor_b32 v3, 128, v{GV}")
        Q(f"buffer_load_dword v{EZ}, v{GV}, {sS}, 0 offen sc1", "gz")
        Q(f"buffer_load_dword v{EZ+1}, v3, {sS}, 0 offen sc1", "gz")
        Q(f"buffer_load_dword v{OMG}, v{GV}, {sS}, 0 offen offset:256 sc1", "gz")
        for u in range(7):
            if u % 2 == 0: Q(f"s_mov_b32 s7, {u*2048}")
            for t in range(2): Q(f"buffer_load_dwordx4 {ar(UR(u,t))}, v{UV}, {sS}, s7 offen offset:{(u&1)*2048+1024*t} sc1", f"u{u}")
            BQ.append(Q); Q = Prog()
        LA = 5
        for _ in range(LA): P.ext(BQ.pop(0))
        DF = lambda i: (lambda r: vr(FR + (i % 3) * 8 + r, 2))
        for i in range(28):
            P.wait(vm=f"h{i}", lg=f"dr{i}")
            rd = []
            if 8 <= i + 2 < 28:
                Q = Prog(); Q.wait(vm=f"d{i+2}"); Q.ext(dread(i + 2, DF(i + 2))); rd = Q.items
            mem = BQ.pop(0).items if BQ else []
            for m in range(4):
                ms, ns = m & 1, m >> 1
                a = ACC + 16 * m
                A = ar(8 * i + 4 * ms) if i < 8 else vr(FR + (i % 3) * 8 + 4 * ms)
                P(f"v_mfma_f32_32x32x16_bf16 {vr(a,16)}, {A}, {ar(HR(i,ns))}, {vr(a,16) if i else 0}")
                if m == 0: P.ext(mem)
                if m == 1: P.ext(rd[:3])
                if m == 2: P.ext(rd[3:])
            if i == 13: st("B13")
        st("B27")
        while BQ: P.ext(BQ.pop(0))
        P.wait(vm="gz")
        for ns in range(2):
            for k in range(8):
                P(f"v_mul_f32 v2, v{RB+2*k}, v{EZ+ns}\nv_mul_f32 v3, v{RB+2*k+1}, v{EZ+ns}\nv_cvt_pk_bf16_f32 v{RS+8*ns+k}, v2, -v3")
        G = lambda t, ms: 192 + (2 * t + ms) * 16
        for u in range(7):
            P.wait(vm=f"u{u}")
            for t in range(2):
                for ms in range(2):
                    P(f"v_mfma_f32_32x32x16_bf16 {vr(G(t,ms),16)}, {ar(UR(u,t))}, {vr(FI+(2*u+ms)*4)}, {vr(G(t,ms),16) if u else 0}")
        RA = 24
        P(f"v_add_u32 v{RA+3}, s5, v32")
        for s in range(1, 4):
            P(f"s_xor_b32 s3, s28, {s}\ns_mul_i32 s3, s3, 24576\nv_add_u32 v{RA+s-1}, s3, v32")
        P(f"""v_and_b32 v1, 31, v0
v_mul_u32_u24 v1, 57344, v1
v_lshrrev_b32 v2, 5, v0
v_lshl_add_u32 v1, v2, 4, v1
s_lshl_b32 s3, s60, 1
s_add_u32 s3, s3, s63
s_mul_i32 s3, s3, 896
s_lshl_b32 s7, s32, 1
s_add_u32 s7, s7, s33
s_lshl_b32 s7, s7, 6
s_add_u32 s3, s3, s7
v_add_u32 v28, s3, v1""")
        GO = lambda t, ms, ns: FI + ((t * 2 + ms) * 2 + ns) * 4
        for t in range(2):
            for ms in range(2):
                for ns in range(2):
                    for i in range(4):
                        P(f"v_cvt_pk_bf16_f32 v{GO(t,ms,ns)+i}, v{G(t,ms)+4*i+2*ns}, v{G(t,ms)+4*i+2*ns+1}")
        for m in (3, 2, 1, 0):
            ms, ns = m & 1, m >> 1
            for t in range(2):
                P(f"v_mfma_f32_32x32x16_bf16 {vr(ACC+16*m,16)}, {vr(GO(t,ms,ns))}, {vr(RS+8*ns+4*t)}, {vr(ACC+16*m,16)}")
        st("P3")
        for s in (3, 2, 1):
            for q in range(4): P(f"ds_write_b128 v{RA+3}, {vr(ACC+16*s+4*q)} offset:{(s-1)*4096+1024*q}")
        P.wait(lg=0); P("s_barrier")
        for q in range(4):
            for s in range(1, 4): P(f"ds_read_b128 {vr(192+16*(s-1)+4*q)}, v{RA+s-1} offset:{(s-1)*4096+1024*q}", f"t{q}")
        P(f"s_or_b32 s3, s2, s28\ns_cmp_eq_u32 s3, 0\ns_mov_b32 s7, {OOB}\ns_cselect_b32 s3, {EP_OFF}, s7\nv_mov_b32 v1, s3")
        P(f"buffer_store_dword v30, v1, {sS}, 0 offen sc1")
        for q in range(4):
            P.wait(lg=f"t{q}")
            for e in range(4):
                r = 4 * q + e
                P(f"v_add_f32 v{ACC+r}, v{ACC+r}, v{192+r}\nv_add_f32 v{208+r}, v{208+r}, v{224+r}")
            for e in range(4):
                r = 4 * q + e
                P(f"v_add_f32 v{ACC+r}, v{ACC+r}, v{208+r}")
            for e in range(4):
                r = 4 * q + e
                P(f"v_mul_f32 v{ACC+r}, v{ACC+r}, v{OMG}")
            for e in range(2): P(f"v_cvt_pk_bf16_f32 v{4+2*q+e}, v{ACC+4*q+2*e}, v{ACC+4*q+2*e+1}")
            if q & 1: P(f"buffer_store_dwordx4 {vr(4+4*(q>>1))}, v28, {sO}, 0 offen offset:{32*(q>>1)}")
        st("end")
        self.dump_stamps(P, "main")
        P("s_endpgm")
        return P

    def spare(self):
        c = self.c; P = Prog(); st = lambda n: self.stamp(P, "spare", n)
        P("L_spare:")
        P("""s_lshl_b32 s29, s33, 2
s_add_u32 s29, s29, s34
s_sub_u32 s29, s29, 28
s_lshr_b32 s30, s29, 1
s_and_b32 s39, s29, 1
v_and_b32 v1, 15, v0
v_lshrrev_b32 v2, 4, v0""")
        P(f"""s_cmp_eq_u32 s30, 0
s_cselect_b32 s42, {(16-1024) & 0xffffffff}, s30
s_mov_b32 s41, s30
s_cmp_ge_u32 s28, 2
s_cselect_b32 s40, s42, s41""")
        RAW = 160; NY = 224; CO = 8 - 8
        WA = 4
        P(f"""s_lshl_b32 s3, s28, 9
s_add_u32 s3, s3, s40
v_lshl_add_u32 v3, v2, 7, s3
s_mul_i32 s7, s39, 224
v_mad_u32_u24 v12, v1, 14, s7""")
        for r in range(4):
            P(f"""v_add_u32 v13, {32*r}, v3
v_sub_u32 v14, 2048, v13""")
            if r == 0: P("v_cmp_eq_u32 s[44:45], 0, v13\nv_mov_b32 v15, 1024\ns_nop 0\nv_cndmask_b32 v14, v14, v15, s[44:45]")
            P(f"v_mul_u32_u24 v{WA+r}, 450, v13\nv_mul_u32_u24 v{WA+4+r}, 450, v14")
        P(f"""s_and_b32 s3, s28, 1
s_lshl_b32 s3, s3, 4
v_add_u32 v13, s3, v1
v_mul_u32_u24 v13, 57344, v13
v_lshlrev_b32 v14, 4, v2
s_lshr_b32 s3, s28, 1
s_lshl_b32 s7, s29, 1
s_add_u32 s3, s3, s7
s_mul_i32 s3, s3, 896
v_add3_u32 v13, v13, v14, s3
v_mov_b32 v15, {EP_OFF}""")
        P("s_waitcnt lgkmcnt(0)")
        self.srd(P, 8, 64, 1835008); self.srd(P, 12, 66, 921600); self.srd(P, 16, 68, 921600)
        self.srd(P, 20, 82, WS_SIZE); self.srd(P, 24, 78, 896)
        P(f"buffer_load_dword v30, v15, {sS}, 0 offen sc1", "ep")
        rw = lambda r, k: RAW + (r * 4 + k) * 4
        for r in range(4):
            for k in range(4):
                P(f"buffer_load_short_d16_hi v{NY+4*r+k}, v{WA+r+4*(k>>1)}, {sD if k&1 else sW}, 0 offen offset:448", "ny")
        for r in range(8): P(f"v_add_u32 v{WA+r}, v{WA+r}, v12")
        LQ = []
        for r in range(4):
            for k in range(4):
                LQ.append(Ins(f"buffer_load_dwordx4 {vr(rw(r,k))}, v{WA+r+4*(k>>1)}, {sD if k&1 else sW}, 0 offen", "raw"))
        GX = 128; GW = 184
        for ks in range(14):
            LQ.append(Ins(f"buffer_load_dwordx4 {ar(GX+4*ks)}, v13, {sX}, 0 offen offset:{64*ks}", "gx"))
            LQ.append(Ins(f"buffer_load_dwordx4 {ar(GW+4*ks)}, v14, {sO}, 0 offen offset:{64*ks}", "gx"))
        def lq(n):
            for _ in range(n):
                if LQ: P.items.append(LQ.pop(0))
        lq(8)
        T = 33
        P(f"""s_lshl_b32 s3, s28, 9
s_add_u32 s3, s3, s40
v_lshl_add_u32 v3, v1, 5, s3
v_cmp_eq_u32 s[46:47], 0, v3
v_cvt_f32_u32 v3, v3
v_mul_f32 v{T}, {f2h(1/2048)}, v3
v_lshlrev_b32 v3, 2, v2
v_cvt_f32_u32 v{T+2}, v3
v_mul_f32 v{T+1}, v{T+2}, v{T}
s_cmp_eq_u32 s30, 0
s_cselect_b32 s48, 0xffff, -1
s_cselect_b32 s49, 16, 0
s_cmp_ge_u32 s28, 2
s_cselect_b32 s49, s49, 0
v_mov_b32 v{T+3}, 0x3f80
v_mov_b32 v{T+4}, 0xbf80""")
        A0 = 40
        for u in range(4):
            for e in range(4): P(f"v_fmamk_f32 v{A0+e}, v{T}, {f2h(float(16*u+e))}, v{T+1}")
            for e in range(4): P(f"v_cos_f32 v{A0+4+e}, v{A0+e}\nv_sin_f32 v{A0+e}, v{A0+e}")
            lq(2)
            for e in range(4):
                P(f"v_cvt_pk_bf16_f32 v{A0+8+e}, v{A0+4+e}, v{A0+e}\nv_cvt_pk_bf16_f32 v{A0+12+e}, -v{A0+e}, v{A0+4+e}")
            for e in range(8): P(f"v_and_b32 v{A0+8+e}, s48, v{A0+8+e}")
            lq(2)
            for e in range(8): P(f"v_lshlrev_b32 v{A0+8+e}, s49, v{A0+8+e}")
            for e in range(4): P(f"v_cndmask_b32 v{A0+12+e}, v{A0+12+e}, v{T+3+(e&1)}, s[46:47]")
            for e in range(4): P(f"v_accvgpr_write_b32 a{4*u+e}, v{A0+8+e}\nv_accvgpr_write_b32 a{16+4*u+e}, v{A0+12+e}")
            lq(1)
        P(f"""s_lshl_b32 s3, s28, 4
v_add_u32 v3, s3, v1
v_cvt_f32_u32 v3, v3
v_mul_f32 v{T}, {f2h(1/2048)}, v3
v_lshl_add_u32 v3, v2, 7, s41
v_cmp_eq_u32 s[46:47], 0, v3
v_cvt_f32_i32 v{T+1}, v3
v_lshl_add_u32 v3, v2, 7, s42
v_cvt_f32_i32 v{T+2}, v3
v_mul_f32 v{T+1}, v{T+1}, v{T}
v_mul_f32 v{T+2}, v{T+2}, v{T}
v_lshlrev_b32 v3, 31, v0
v_xor_b32 v{T+3}, 0x3f803f80, v3
s_cmp_eq_u32 s30, 0
s_cselect_b32 s50, -1, 0
s_cselect_b32 s51, -1, 0""")
        for u in range(4):
            for e in range(4): P(f"v_fmamk_f32 v{A0+e}, v{T}, {f2h(float(512*u+32*e))}, v{T+1+(u>>1)}")
            for e in range(4): P(f"v_cos_f32 v{A0+4+e}, v{A0+e}\nv_sin_f32 v{A0+e}, v{A0+e}")
            lq(2)
            for e in range(4):
                P(f"v_cvt_pk_bf16_f32 v{A0+8+e}, v{A0+4+e}, -v{A0+e}\nv_cvt_pk_bf16_f32 v{A0+12+e}, v{A0+e}, v{A0+4+e}")
            if u == 0: P(f"v_cndmask_b32 v{A0+8}, v{A0+8}, v{T+3}, s[46:47]")
            for e in range(4):
                if u < 2: P(f"v_cndmask_b32 v{A0+12+e}, v{A0+12+e}, 0, s[50:51]")
                else: P(f"v_cndmask_b32 v{A0+12+e}, v{A0+12+e}, v{A0+8+e}, s[50:51]\nv_cndmask_b32 v{A0+8+e}, v{A0+8+e}, 0, s[50:51]")
            lq(2)
            for e in range(4): P(f"v_accvgpr_write_b32 a{32+4*u+e}, v{A0+8+e}\nv_accvgpr_write_b32 a{48+4*u+e}, v{A0+12+e}")
        lq(99)
        st("trig")
        P.wait(vm="raw")
        self.tag(P)
        CB = lambda b: 48 + 16 * b
        P(f"v_mov_b32 v3, 0xffff0000")
        X2 = lambda b: (4 + 4 * b) if b < 6 else 44
        SB = 34
        U0 = 240
        def coef(dst, x2, src, r):
            P(f"""v_add_f32 v{dst+r}, v{src(0)}, v{src(2)}
v_sub_f32 v{dst+4+r}, v{src(1)}, v{src(3)}
v_sub_f32 v{dst+8+r}, v{src(0)}, v{src(2)}
v_add_f32 v{dst+12+r}, v{src(1)}, v{src(3)}""")
            if r == 0:
                P(f"""v_cndmask_b32 v{x2}, v{dst}, v{src(2)}, s[44:45]
v_cndmask_b32 v{x2+2}, v{dst+12}, v{src(3)}, s[44:45]
v_cndmask_b32 v{dst}, v{dst}, v{src(0)}, s[44:45]
v_cndmask_b32 v{dst+12}, v{dst+12}, v{src(1)}, s[44:45]
v_cndmask_b32 v{dst+4}, v{dst+4}, 0, s[44:45]
v_cndmask_b32 v{dst+8}, v{dst+8}, 0, s[44:45]""")
            if r == 1: P(f"v_mov_b32 v{x2+1}, v{dst+1}\nv_mov_b32 v{x2+3}, v{dst+13}")
        for b in range(7):
            for r in range(4):
                for k in range(4):
                    s = rw(r, k) + (b >> 1)
                    P(f"v_and_b32 v{U0+k}, v3, v{s}" if b & 1 else f"v_lshlrev_b32 v{U0+k}, 16, v{s}")
                coef(CB(b), X2(b), lambda k: U0 + k, r)
        for r in range(4): coef(160, 176, lambda k: NY + 4 * r + k, r)
        P(f"v_lshl_add_u32 v3, v1, 1, s39\nv_cmp_eq_u32 s[46:47], 0, v3\nv_mov_b32 v{U0}, 1.0\ns_nop 0\nv_cndmask_b32 v{U0+1}, v{U0}, 0.5, s[46:47]\nv_cndmask_b32 v{U0+2}, v{U0}, 0, s[46:47]")
        for k in range(8): P(f"v_cndmask_b32 v{SB+k}, v{CB(0)+k}, v{160+k}, s[46:47]")
        for k in range(2): P(f"v_cndmask_b32 v{SB+8+k}, v{X2(0)+k}, v{176+k}, s[46:47]")
        for rg in list(range(SB, SB + 10)) + list(range(CB(0), CB(0) + 8)) + [X2(0), X2(0) + 1]:
            P(f"v_mul_f32 v{rg}, v{rg}, v{U0+1}")
        for rg in list(range(CB(0) + 8, CB(0) + 16)) + [X2(0) + 2, X2(0) + 3]:
            P(f"v_cndmask_b32 v{rg}, v{rg}, 0, s[46:47]")
        st("coef")
        P.wait(vm="gx")
        for ks in range(14):
            P(f"v_mfma_f32_16x16x32_bf16 v[160:163], {ar(GW+4*ks)}, {ar(GX+4*ks)}, {'v[160:163]' if ks else 0}")
        FA, DA, TR, YW, SA, FS = 244, 246, 248, 250, 251, 252
        P(f"""v_lshrrev_b32 v3, 2, v0
v_mul_u32_u24 v3, {14*128}, v3
v_and_b32 v{FA}, 3, v0
v_lshl_add_u32 v3, v{FA}, 7, v3
s_mul_i32 s3, s39, {7*128}
s_add_u32 s3, s3, {U1F_OFF}
v_add_u32 v{FA}, s3, v3
v_lshrrev_b32 v3, 5, v0
v_lshlrev_b32 v3, 5, v3
v_xor_b32 v3, v3, v32
s_mul_i32 s3, s30, 14
s_mul_i32 s7, s39, 7
s_add_u32 s3, s3, s7
s_lshl_b32 s3, s3, 13
s_lshl_b32 s4, s28, 11
s_add_u32 s3, s3, s4
s_add_u32 s3, s3, {U1_OFF}
v_add_u32 v{DA}, s3, v3
v_bfe_u32 v3, v0, 2, 2
v_lshl_add_u32 v3, v2, 3, v3
v_lshlrev_b32 v3, 6, v3
v_and_b32 v{TR}, 3, v0
v_lshl_add_u32 v3, v{TR}, 3, v3
v_and_b32 v{TR}, 1, v2
v_lshl_add_u32 v{TR}, v{TR}, 5, v3
v_xor_b32 v{TR+1}, 32, v{TR}
v_add_u32 v33, 65536, v32
v_add_u32 v{YW}, s4, v33
v_lshrrev_b32 v3, 1, v1
v_mul_u32_u24 v3, 57344, v3
v_and_b32 v{SA}, 1, v0
v_lshl_add_u32 v3, v{SA}, 6, v3
v_lshl_add_u32 v3, v2, 4, v3
s_mul_i32 s3, s28, {8*57344}
s_lshl_b32 s7, s7, 12
s_add_u32 s3, s3, s7
s_lshl_b32 s7, s30, 7
s_add_u32 s3, s3, s7
s_add_u32 s3, s3, {U2_OFF}
v_add_u32 v{SA}, s3, v3
s_lshl_b32 s3, s29, 7
s_add_u32 s3, s3, {U2F_OFF}
s_cmp_eq_u32 s28, 0
s_cselect_b32 s3, s3, {OOB}
v_mov_b32 v3, s3
v_mov_b32 v{FS}, {OOB}
v_cmp_eq_u32 s[46:47], 0, v0
s_lshl_b32 s3, s29, 9
s_lshl_b32 s7, s28, 6
v_cndmask_b32 v{FS}, v{FS}, v3, s[46:47]
s_add_u32 s3, s3, s7
s_add_u32 s3, s3, {GZ_OFF}
v_and_b32 v3, 1, v2
v_cmp_eq_u32 s[46:47], 1, v3
v_lshlrev_b32 v3, 8, v3
v_lshl_add_u32 v3, v1, 2, v3
v_add_u32 v3, s3, v3
v_min_f32 v160, {f2h(40.0)}, v160
v_max_f32 v160, {f2h(-40.0)}, v160
v_mul_f32 v160, {f2h(1.4426950408889634)}, v160
v_exp_f32 v160, v160
v_add_f32 v161, 1.0, v160
v_rcp_f32 v161, v161
v_mul_f32 v160, {f2h(2.0/(2048*448))}, v160
v_cndmask_b32 v160, v160, v161, s[46:47]
s_mov_b32 exec_hi, 0""")
        P(f"buffer_store_dword v160, v3, {sS}, 0 offen sc1")
        P("s_mov_b32 exec_hi, -1")
        st("gate")
        P(f"""s_cmp_lg_u32 s28, 0
s_cbranch_scc1 L_u1ok
s_mov_b32 s38, 0
L_u1poll:
buffer_load_dword v160, v{FA}, {sS}, 0 offen sc1
buffer_load_dword v161, v{FA}, {sS}, 0 offen offset:384 sc1
s_add_u32 s38, s38, 1
s_waitcnt vmcnt(0)
v_cmp_ne_u32 s[36:37], v30, v160
v_cmp_ne_u32 s[46:47], v30, v161
s_nop 1
s_or_b64 s[36:37], s[36:37], s[46:47]
s_cbranch_scc0 L_u1ok
s_sleep 4
s_cmp_lt_u32 s38, {SPIN_MAX}
s_cbranch_scc1 L_u1poll
L_u1ok:""")
        P.wait(vm=0); P("s_barrier")
        st("u1ok")
        for b in range(7):
            P(f"s_add_u32 m0, s4, {8192*b}\ns_mov_b32 s7, {8192*b}")
            for k in range(2): P(f"buffer_load_dwordx4 v{DA}, {sS}, s7 offen offset:{1024*k} sc1 lds", f"t{b}")
        TF = 64; YF = 96
        Z = 160; Y = 176; YO = 192; V = 200; VO = 216
        for b in range(8):
            P.wait(vm=f"t{b}" if b < 7 else None, lg=0); P("s_barrier")
            if b == 0: st("t0")
            if b < 7:
                for u in range(4):
                    for pq in range(2):
                        for rr in range(2):
                            P(f"ds_read_b64_tr_b16 {ar(TF+(2*u+pq)*4+2*rr,2)}, v{TR+pq} offset:{8192*b+2048*u+256*rr}", f"tr{u}")
                for u in range(4):
                    P.wait(lg=f"tr{u}")
                    for pq in range(2):
                        for ri in range(2):
                            z = Z + (2 * pq + ri) * 4
                            P(f"v_mfma_f32_16x16x32_bf16 {vr(z)}, {ar(16*ri+4*u)}, {ar(TF+(2*u+pq)*4)}, {vr(z) if u else 0}")
                    if b > 0:
                        for pq in range(2): P(f"ds_read_b128 {ar(YF+(2*u+pq)*4)}, v33 offset:{8192*((b-1)&1)+2048*u+1024*pq}", f"y{u}")
            elif b > 0:
                for u in range(4):
                    for pq in range(2): P(f"ds_read_b128 {ar(YF+(2*u+pq)*4)}, v33 offset:{8192*((b-1)&1)+2048*u+1024*pq}", f"y{u}")
            PW = Filler()
            if b < 7:
                Q = Prog(); cb_ = CB(b)
                Pr, Pi, Qr, Qi = Z, Z + 4, Z + 8, Z + 12
                ng = "neg_lo:[1,0,0] neg_hi:[1,0,0]"
                for hh in (0, 2):
                    p2 = lambda x: vr(x + hh, 2)
                    Sr, Si, Dr, Di = p2(cb_), p2(cb_ + 4), p2(cb_ + 8), p2(cb_ + 12)
                    Sr2, Di2 = (vr(X2(b), 2), vr(X2(b) + 2, 2)) if hh == 0 else (Sr, Di)
                    Sbr, Sbi, Sbr2 = Sr, Si, Sr2
                    if b == 0: Sbr, Sbi = p2(SB), p2(SB + 4); Sbr2 = vr(SB + 8, 2) if hh == 0 else Sbr
                    o = [p2(Y + 4 * k) for k in range(4)]
                    Q(f"""v_pk_mul_f32 {o[0]}, {Sr}, {p2(Pr)}
v_pk_mul_f32 {o[1]}, {Si}, {p2(Pr)}
v_pk_mul_f32 {o[2]}, {Sbr}, {p2(Qr)}
v_pk_mul_f32 {o[3]}, {Sbi}, {p2(Qr)}
v_pk_fma_f32 {o[0]}, {Si}, {p2(Pi)}, {o[0]} {ng}
v_pk_fma_f32 {o[1]}, {Sr2}, {p2(Pi)}, {o[1]}
v_pk_fma_f32 {o[2]}, {Sbi}, {p2(Qi)}, {o[2]} {ng}
v_pk_fma_f32 {o[3]}, {Sbr2}, {p2(Qi)}, {o[3]}
v_pk_fma_f32 {o[0]}, {Di}, {p2(Qr)}, {o[0]} {ng}
v_pk_fma_f32 {o[1]}, {Dr}, {p2(Qr)}, {o[1]}
v_pk_fma_f32 {o[2]}, {Di}, {p2(Pr)}, {o[2]}
v_pk_fma_f32 {o[3]}, {Dr}, {p2(Pr)}, {o[3]} {ng}
v_pk_fma_f32 {o[0]}, {Dr}, {p2(Qi)}, {o[0]} {ng}
v_pk_fma_f32 {o[1]}, {Di2}, {p2(Qi)}, {o[1]} {ng}
v_pk_fma_f32 {o[2]}, {Dr}, {p2(Pi)}, {o[2]}
v_pk_fma_f32 {o[3]}, {Di2}, {p2(Pi)}, {o[3]}""")
                for pq in range(2):
                    for r in range(4): Q(f"v_cvt_pk_bf16_f32 v{YO+4*pq+r}, v{Y+8*pq+r}, v{Y+8*pq+4+r}")
                    Q(f"ds_write_b128 v{YW}, {vr(YO+4*pq)} offset:{8192*(b&1)+1024*pq}")
                PW.add(Q)
            if b > 0:
                n = 0
                for u in range(4):
                    P.wait(lg=f"y{u}")
                    for pq in range(2):
                        for j2 in range(2):
                            v = V + (2 * j2 + pq) * 4
                            P(f"v_mfma_f32_16x16x32_bf16 {vr(v)}, {ar(YF+(2*u+pq)*4)}, {ar(32+16*j2+4*u)}, {vr(v) if u else 0}")
                            n += 1
                            if n > 4: PW.take(P, 2)
            PW.flush(P)
            if b > 0:
                for k in range(8): P(f"v_cvt_pk_bf16_f32 v{VO+k}, v{V+2*k}, v{V+2*k+1}")
                for e in range(4): P(f"v_permlane32_swap_b32 v{VO+e}, v{VO+4+e}")
                P(f"s_mov_b32 s7, {4096*(b-1)}")
                for kk in range(2): P(f"buffer_store_dwordx4 {vr(VO+4*kk)}, v{SA}, {sS}, s7 offen offset:{2048*kk} sc1")
        st("p2")
        P.wait(vm=0); P("s_barrier")
        P(f"buffer_store_dword v30, v{FS}, {sS}, 0 offen sc1")
        st("end")
        self.dump_stamps(P, "spare")
        P("L_exit:\ns_endpgm")
        return P

    def build(self):
        pro = self.prologue(); m = self.main(); s = self.spare()
        M = Prog(); M.ext(pro); M.ext(m)
        mi, n1 = finish(M)
        si, n2 = finish(s)
        hdr = open("gated_mix__spectral_gfnet__swiglu_ffn__prompt.s.ref").read().split("; Override")[0] if False else ""
        out = ["; @launch grid=(256,1,1) block=(256,1,1) lds=163840",
               '.amdgcn_target "amdgcn-amd-amdhsa--gfx950"', ".text", f".globl {KNAME}", ".p2align 8",
               f".type {KNAME},@function", f"{KNAME}:", text(mi), text(si)] + self.ool
        out.append(f""".section .rodata,"a"
.p2align 6
.amdhsa_kernel {KNAME}
  .amdhsa_next_free_vgpr 512
  .amdhsa_next_free_sgpr 102
  .amdhsa_accum_offset 256
  .amdhsa_group_segment_fixed_size 0
  .amdhsa_kernarg_size 88
  .amdhsa_user_sgpr_count 2
  .amdhsa_user_sgpr_kernarg_segment_ptr 1
  .amdhsa_system_sgpr_workgroup_id_x 1
.end_amdhsa_kernel
""")
        sys.stderr.write(f"main {len(mi)} ins ({n1} pad), spare {len(si)} ins ({n2} pad)\n")
        return "\n".join(out)

if __name__ == "__main__":
    cfg = Cfg(); outp = sys.argv[1]
    for a in sys.argv[2:]:
        k, v = a.split("="); setattr(cfg, k, type(getattr(Cfg, k))(int(v)))
    g = Gen(cfg); s = g.build()
    if cfg.stamps: s = s.replace("\n", "\n; stamps " + repr(g.stn) + "\n", 1)
    open(outp, "w").write(s)
```

```python
import sys, struct
from asmlib import *

KNAME = "gated_mix__spectral_gfnet__swiglu_ffn__prompt_kernel"
H_OFF = 0; U1_OFF = 0x700000; U2_OFF = 0x8C0000; GZ_OFF = 0xA80000
HF_OFF = 0xA90000; U1F_OFF = 0xA98000; U2F_OFF = 0xAA0000; EP_OFF = 0xAA2000
ST_OFF = 0xAB0000; WS_SIZE = 0xB00000
OOB = 0x7FFFFF00
def f2h(x): return "0x%08x" % struct.unpack("<I", struct.pack("<f", x))[0]
def vr(b, n=4): return f"v[{b}:{b+n-1}]"
def ar(b, n=4): return f"a[{b}:{b+n-1}]"
sX, sW, sD, sS, sO = "s[8:11]", "s[12:15]", "s[16:19]", "s[20:23]", "s[24:27]"
SPIN_MAX = 200000

class Cfg:
    stamps = False
    cyc = False
    rot = True
    x_first = 10
    pub_chunk = 1
    D = 3
    fill = 3
    force_nonlocal = False
    amp_a = -1
    amp_b = -1
    amp_wg = 0
    sp_test = 0

class Gen:
    def __init__(self, cfg):
        self.c = cfg; self.ool = []; self.nst = 0; self.stn = {}
    def srd(self, P, base, lo, size):
        P(f"s_mov_b32 s{base}, s{lo}\ns_and_b32 s{base+1}, s{lo+1}, 0xffff\ns_mov_b32 s{base+2}, {size}\ns_mov_b32 s{base+3}, 0x20000")
    def stamp(self, P, path, name):
        if not self.c.stamps: return
        l = self.stn.setdefault(path, ["entry"])
        k = len(l); l.append(name); assert k < 18
        P(f"s_mem{'time' if self.c.cyc else 'realtime'} s[{98-2*k}:{99-2*k}]")
    def dump_stamps(self, P, path):
        if not self.c.stamps: return
        P("s_waitcnt lgkmcnt(0)")
        if self.c.amp_a >= 0:
            P(f"""s_cmp_lg_u32 s2, {self.c.amp_wg}
s_cbranch_scc1 L_amp_{path}
s_sub_u32 s3, s{98-2*self.c.amp_b}, s{98-2*self.c.amp_a}
s_mul_i32 s3, s3, 10
s_min_u32 s3, s3, 100000
s_memrealtime s[36:37]
s_waitcnt lgkmcnt(0)
L_ampl_{path}:
s_memrealtime s[4:5]
s_waitcnt lgkmcnt(0)
s_sub_u32 s4, s4, s36
s_cmp_lt_u32 s4, s3
s_cbranch_scc1 L_ampl_{path}
L_amp_{path}:""")
            return
        P(f"s_lshl_b32 s3, s2, 2\ns_add_u32 s3, s3, s28\ns_lshl_b32 s3, s3, 7\ns_add_u32 s3, s3, {ST_OFF}")
        P("v_mov_b32 v1, 0\ns_mov_b64 exec, 1")
        for k in range(len(self.stn[path])):
            P(f"v_mov_b32 v2, s{98-2*k}\nbuffer_store_dword v2, v1, {sS}, s3 offen offset:{4*k}\ns_nop 1")
    def check(self, P, name, load, cmpreg, tagreg=30):
        P(f"v_cmp_ne_u32 s[36:37], v{tagreg}, v{cmpreg}\ns_cmp_lg_u64 s[36:37], 0\ns_cbranch_scc1 SPIN_{name}\nBACK_{name}:")
        self.ool.append(f"""SPIN_{name}:
    s_mov_b32 s38, 0
LOOP_{name}:
    s_sleep 2
    {load}
    s_add_u32 s38, s38, 1
    s_waitcnt vmcnt(0)
    v_cmp_ne_u32 s[36:37], v{tagreg}, v{cmpreg}
    s_nop 1
    s_cmp_eq_u64 s[36:37], 0
    s_cbranch_scc1 BACK_{name}
    s_cmp_lt_u32 s38, {SPIN_MAX}
    s_cbranch_scc1 LOOP_{name}
    s_endpgm""")
    def lstore(self, P, txt, tag=None):
        k = self.nst; self.nst += 1
        P(f"s_cbranch_vccnz GST_{k}")
        P(txt, tag)
        P(f"GBK_{k}:")
        self.ool.append(f"GST_{k}:\n    s_nop 1\n    {txt} sc1\n    s_branch GBK_{k}")

    def prologue(self):
        P = Prog()
        if self.c.stamps: P(f"s_mem{'time' if self.c.cyc else 'realtime'} s[98:99]")
        P("""s_cmp_ge_u32 s2, 256
s_cbranch_scc1 L_exit
s_load_dwordx16 s[64:79], s[0:1], 0
s_load_dwordx2 s[80:81], s[0:1], 64
s_load_dwordx2 s[82:83], s[0:1], 80
v_lshrrev_b32 v1, 6, v0
v_and_b32 v0, 63, v0
s_and_b32 s33, s2, 7
v_readfirstlane_b32 s28, v1
s_lshr_b32 s34, s2, 3
s_getreg_b32 s35, hwreg(HW_REG_XCC_ID)
v_lshlrev_b32 v32, 4, v0
v_mov_b32 v31, s35
s_cmp_ge_u32 s34, 28
s_cbranch_scc1 L_spare""")
        return P
    def tag(self, P):
        P(f"s_mov_b32 s3, 0x9E3779B1\nv_mul_lo_u32 v30, v30, s3\nv_add_u32 v30, 0x7F4A7C15, v30")

    def main(self):
        c = self.c; P = Prog(); st = lambda n: self.stamp(P, "main", n)
        XD, XR, XP, WD, WR, DD, DRL, DRH = 4, 8, 12, 16, 20, 24, 26, 28
        T = 33; FR = 48; FI = 72; ACC = 128
        C1, C2, R32, X1O, U1O = 72, 88, 104, 112, 120
        RING = 98304; FST = 131072
        XA = lambda tile, ks: (tile * 28 + ks) * 4
        P("""s_and_b32 s29, s34, 1
s_lshl_b32 s33, s33, 1
s_add_u32 s29, s29, s33
s_lshr_b32 s30, s34, 1
s_cmp_ge_u32 s30, 7
s_cselect_b32 s39, 1, 0
s_mul_i32 s32, s39, 7
s_sub_u32 s32, s30, s32""")
        if c.rot:
            P("""s_add_u32 s31, s29, s30
s_mul_i32 s33, s31, 37
s_lshr_b32 s33, s33, 8
s_mul_i32 s33, s33, 7
s_sub_u32 s31, s31, s33""")
        else: P("s_mov_b32 s31, 0")
        P(f"""v_lshrrev_b32 v1, 3, v0
v_and_b32 v2, 7, v0
v_lshrrev_b32 v3, 4, v0
v_xor_b32 v3, v2, v3
v_mul_u32_u24 v{T}, 57344, v1
s_lshl_b32 s33, s29, 2
s_add_u32 s61, s33, s28
s_mul_i32 s33, s61, 896
v_add_u32 v{T}, s33, v{T}
v_lshl_add_u32 v{XD}, v3, 4, v{T}
v_xor_b32 v3, 4, v3
v_lshl_add_u32 v{XD+1}, v3, 4, v{T}
v_add_u32 v{XD+2}, {2*(8*57344-1024)}, v{XD}
v_add_u32 v{XD+3}, {3*(8*57344-1024)}, v{XD+1}
v_add_u32 v{XD+1}, {8*57344-1024}, v{XD+1}
s_mul_i32 s62, s28, 28672
s_mov_b32 s33, s31""")
        for i in range(7):
            P(f"s_lshl_b32 s{54+i}, s33, 7")
            if i < 6: P("s_add_u32 s33, s33, 1\ns_cmp_eq_u32 s33, 7\ns_cselect_b32 s33, 0, s33")
        P(f"v_mov_b32 v{T}, {EP_OFF}")
        if c.sp_test: st("prewait")
        P("s_waitcnt lgkmcnt(0)")
        if c.sp_test: st("karg")
        self.srd(P, 8, 64, 1835008)
        self.srd(P, 20, 82, WS_SIZE)
        def xload(n):
            Q = Prog(); sl, i = divmod(n, 4)
            if i == 0: Q(f"s_add_u32 m0, s62, {sl*4096}")
            Q(f"buffer_load_dwordx4 v{XD+i}, {sX}, s{54+sl} offen offset:{1024*i} lds", f"x{sl}")
            return Q
        nx = 0
        for n in range(c.x_first):
            P.ext(xload(n)); nx += 1
            if n == 3: P(f"buffer_load_dword v30, v{T}, {sS}, 0 offen sc1", "ep")
        st("xissued")
        P("s_and_b32 s33, s28, 1\ns_cmp_eq_u32 s33, 1\ns_cselect_b32 s72, s74, s72\ns_cselect_b32 s73, s75, s73")
        self.srd(P, 12, 72, 1605632)
        self.srd(P, 16, 76, 1605632)
        self.srd(P, 24, 80, 1835008)
        STEP, PHI, D0, A0 = T, T+1, T+2, T+3
        P(f"""v_bfe_u32 v1, v0, 3, 2
v_and_b32 v2, 3, v0
v_lshl_add_u32 v1, v1, 2, v2
s_mul_i32 s33, s39, 112
s_add_u32 s33, s33, s32
v_mad_u32_u24 v1, v1, 7, s33
v_bfe_u32 v2, v0, 2, 1
v_lshl_add_u32 v3, v1, 1, v2
v_cmp_eq_u32 vcc, 1, v3
v_mov_b32 v3, 224
v_cndmask_b32 v1, v1, v3, vcc
v_cndmask_b32 v2, v2, 0, vcc
v_cvt_f32_u32 v1, v1
v_cvt_f32_u32 v2, v2
v_mul_f32 v{STEP}, {f2h(1/448)}, v1
v_mul_f32 v{PHI}, {f2h(0.25)}, v2
v_lshrrev_b32 v1, 5, v0
s_mul_i32 s33, s28, 112
s_lshl_b32 s3, s31, 6
s_add_u32 s33, s33, s3
v_lshl_add_u32 v1, v1, 3, s33
v_cvt_f32_u32 v{D0}, v1
s_mul_i32 s33, s28, 7168
s_add_u32 s33, s33, {FST}
v_add_u32 v3, s33, v32""")
        for i in range(7):
            o = FR + 4 * (i & 1)
            P(f"v_mul_f32 v{A0}, v{D0}, v{STEP}\nv_fract_f32 v{A0}, v{A0}\nv_add_f32 v{A0}, v{A0}, v{PHI}")
            if i < 6: P(f"v_add_f32 v{D0}, {f2h(16.0)}, v{D0}")
            for e in range(1, 8): P(f"v_fmamk_f32 v{A0+e}, v{STEP}, {f2h(float(e))}, v{A0}")
            for e in range(8): P(f"v_cos_f32 v{A0+e}, v{A0+e}")
            for e in range(4): P(f"v_cvt_pk_bf16_f32 v{o+e}, v{A0+2*e}, v{A0+2*e+1}")
            P(f"ds_write_b128 v3, {vr(o)} offset:{1024*i}")
        P.wait(lg=0); P("s_barrier")
        st("Fgen")
        P(f"v_add_u32 v3, {FST}, v32")
        for ks in range(28): P(f"ds_read_b128 {vr(ACC+4*ks)}, v3 offset:{1024*ks}")
        P(f"""v_and_b32 v1, 31, v0
v_cmp_eq_u32 vcc, 1, v1
v_and_b32 v2, 1, v1
v_lshrrev_b32 v1, 1, v1
v_cndmask_b32 v1, v1, 16, vcc
v_cndmask_b32 v2, v2, 0, vcc
v_cvt_f32_u32 v1, v1
v_cvt_f32_u32 v2, v2
v_mul_f32 v{STEP}, {f2h(1/32)}, v1
v_mul_f32 v{PHI}, {f2h(0.25)}, v2
v_lshrrev_b32 v1, 5, v0
v_lshlrev_b32 v1, 2, v1
v_cvt_f32_u32 v1, v1
v_fma_f32 v{PHI}, v1, v{STEP}, v{PHI}""")
        for u in range(2):
            for e in range(8): P(f"v_fmamk_f32 v{A0+e}, v{STEP}, {f2h(float(16*u+8*(e>>2)+(e&3)))}, v{PHI}")
            for e in range(8): P(f"v_cos_f32 v{A0+e}, v{A0+e}")
            for e in range(4): P(f"v_cvt_pk_bf16_f32 v{R32+4*u+e}, v{A0+2*e}, v{A0+2*e+1}")
        P(f"""v_and_b32 v1, 31, v0
v_lshrrev_b32 v2, 5, v0
v_bfe_u32 v3, v0, 1, 3
v_xor_b32 v2, v2, v3
v_lshlrev_b32 v1, 7, v1
s_xor_b32 s33, s28, 1
s_mul_i32 s33, s33, 28672""")
        for k in range(4):
            P(f"v_xor_b32 v3, {2*k}, v2\nv_lshl_add_u32 v3, v3, 4, v1\nv_add_u32 v{XR+k}, s62, v3\nv_add_u32 v{XP+k}, s33, v3")
        P(f"""v_lshrrev_b32 v1, 3, v0
v_and_b32 v2, 7, v0
v_and_b32 v3, 2, v1
v_xor_b32 v{T}, v2, v3
s_and_b32 s33, s28, 1
s_lshl_b32 s3, s33, 2
v_xor_b32 v{T}, s3, v{T}
v_mul_u32_u24 v{T+1}, 3584, v1
v_lshl_add_u32 v{T}, v{T}, 4, v{T+1}
s_lshr_b32 s63, s28, 1
s_lshl_b32 s3, s30, 1
s_add_u32 s3, s3, s63
s_lshl_b32 s3, s3, 7
v_add_u32 v{WD}, s3, v{T}
v_add_u32 v{WD+1}, {28672-1024}, v{WD}
v_add_u32 v{WD+2}, {2*(28672-1024)}, v{WD}
v_add_u32 v{WD+3}, {3*(28672-1024)}, v{WD}
v_lshlrev_b32 v3, 1, v3
v_xor_b32 v2, v2, v3
v_mul_u32_u24 v1, 896, v1
v_lshl_add_u32 v1, v2, 4, v1
s_lshl_b32 s3, s63, 2
s_add_u32 s4, s3, s33
s_mul_i32 s3, s4, 14336
s_lshl_b32 s5, s32, 7
s_add_u32 s3, s3, s5
v_add_u32 v{DD}, s3, v1
v_add_u32 v{DD+1}, {8*896-1024}, v{DD}""")
        P(f"""v_bfe_u32 v1, v0, 4, 1
v_lshrrev_b32 v2, 5, v0
v_bfe_u32 v3, v0, 2, 2
v_lshl_add_u32 v{T}, v2, 3, v3
v_lshlrev_b32 v{T}, 7, v{T}
v_lshl_add_u32 v{T}, v1, 12, v{T}
v_and_b32 v{T+1}, 3, v0
v_lshl_add_u32 v{T}, v{T+1}, 3, v{T}
s_lshl_b32 s3, s33, 13
s_add_u32 s3, s3, {RING}
v_add_u32 v{T}, s3, v{T}
v_bfe_u32 v{T+2}, v0, 3, 1
v_lshl_add_u32 v{T+3}, v1, 1, v{T+2}""")
        for t in range(4):
            P(f"v_xor_b32 v{T+4}, {t}, v{T+3}\nv_lshl_add_u32 v{WR+t}, v{T+4}, 5, v{T}")
        P(f"""v_lshl_add_u32 v2, v2, 2, v3
v_lshlrev_b32 v2, 7, v2
v_lshl_add_u32 v2, v1, 5, v2
v_and_b32 v1, 1, v0
v_lshl_add_u32 v2, v1, 4, v2
v_bfe_u32 v1, v0, 1, 1
v_lshl_add_u32 v2, v1, 3, v2
v_xor_b32 v{T+2}, s33, v{T+2}
v_lshl_add_u32 v2, v{T+2}, 6, v2
v_xor_b32 v3, 64, v2
s_mul_i32 s5, s28, 24576
s_lshl_b32 s6, s28, 12
s_add_u32 s6, s6, {RING}
v_add_u32 v{DRL}, s5, v2
v_add_u32 v{DRL+1}, s5, v3
v_add_u32 v{DRH}, s6, v2
v_add_u32 v{DRH+1}, s6, v3""")
        for i in range(7):
            P(f"s_mul_i32 s{40+2*i}, s{54+i}, 1792\ns_add_u32 s{41+2*i}, s{40+2*i}, {32*3584}")
        P.wait(lg=0); P("s_barrier")
        st("setup")
        def wload(ch):
            Q = Prog()
            Q(f"s_add_u32 m0, s6, {((ch+1)&3)*16384}")
            for i in range(4): Q(f"buffer_load_dwordx4 v{WD+i}, {sW}, s{40+ch} offen offset:{1024*i} lds", f"w{ch}")
            return Q
        def dloc(i):
            if i < 12: return True, i * 2048
            if i >= 20: return True, (i - 20) * 2048
            chn = 10 + (i - 12) // 2
            return False, ((chn + 1) & 3) * 16384 + (i & 1) * 2048
        def ksoff(i): return (i % 14) * 8 + 2 * (i // 14)
        def dload(i):
            Q = Prog(); low, off = dloc(i)
            Q(f"s_add_u32 m0, s{5 if low else 6}, {off}\ns_mov_b32 s7, {ksoff(i)*14336}")
            for k in range(2): Q(f"buffer_load_dwordx4 v{DD+k}, {sD}, s7 offen offset:{1024*k} lds", f"d{i}")
            return Q
        def dread(i, dst):
            Q = Prog(); low, off = dloc(i)
            for ms in range(2):
                for rr in range(2):
                    Q(f"ds_read_b64_tr_b16 {dst(4*ms+2*rr)}, v{(DRL if low else DRH)+ms} offset:{off+1024*rr}", f"dr{i}")
            return Q
        LQ = Filler()
        for n in range(nx, 28): LQ.add(xload(n), atomic=True)
        for ch in range(3):
            it = wload(ch).items
            LQ.add(it[:2], atomic=True)
            for x in it[2:]: LQ.add([x], atomic=True)
        def lq(n):
            for _ in range(n):
                if len(LQ): P.ext(LQ.q.pop(0))
        lq(2)
        for sl in range(7):
            P.wait(vm=f"x{sl}"); P("s_barrier")
            if sl == 0: st("x0")
            for k in range(4):
                P(f"ds_read_b128 {ar(XA(0,4*sl+k))}, v{XR+k} offset:{4096*sl}", f"xr{4*sl+k}")
                lq(1)
            for k in range(4):
                ks = 4 * sl + k
                P(f"ds_read_b128 {ar(XA(1,ks))}, v{XP+k} offset:{4096*sl}", f"xp{ks}")
            for k in range(4):
                ks = 4 * sl + k
                P.wait(lg=f"xr{ks}")
                P(f"v_mfma_f32_32x32x16_bf16 {vr(C1,16)}, {ar(XA(0,ks))}, {vr(ACC+4*ks)}, {vr(C1,16) if ks else 0}")
            if sl == 1: self.tag(P)
        lq(99)
        P.wait(vm="w0", lg=0); P("s_barrier")
        st("Xdone")
        FQ = Filler()
        Q = Prog()
        UA, UF = T + 12, T + 13
        Q(f"""v_bfe_u32 v1, v0, 1, 3
v_mul_u32_u24 v1, {14*8192}, v1
v_and_b32 v2, 1, v0
v_lshl_add_u32 v1, v2, 6, v1
v_lshrrev_b32 v2, 4, v0
v_lshl_add_u32 v1, v2, 4, v1
s_lshl_b32 s3, s30, 13
s_lshl_b32 s34, s61, 7
s_add_u32 s3, s3, s34
v_add_u32 v{UA}, s3, v1""")
        for e in range(8): Q(f"v_cvt_pk_bf16_f32 v{X1O+e}, v{C1+2*e}, v{C1+2*e+1}")
        Q(f"v_mfma_f32_32x32x16_bf16 {vr(C2,16)}, {vr(X1O)}, {vr(R32)}, 0")
        Q(f"v_mfma_f32_32x32x16_bf16 {vr(C2,16)}, {vr(X1O+4)}, {vr(R32+4)}, {vr(C2,16)}")
        Q(f"""s_mul_i32 s3, s29, 14
s_add_u32 s3, s3, s30
s_lshl_b32 s3, s3, 7
s_add_u32 s3, s3, {U1F_OFF}
s_cmp_eq_u32 s28, 0
s_cselect_b32 s3, s3, {OOB}
v_mov_b32 v1, s3
v_mov_b32 v2, {OOB}
v_cmp_eq_u32 s[36:37], 0, v0
s_mov_b32 s54, {U1_OFF}
s_mov_b32 s55, {U1_OFF + 8*14*8192}
v_cndmask_b32 v{UF}, v2, v1, s[36:37]""")
        for e in range(8): Q(f"v_cvt_pk_bf16_f32 v{U1O+e}, v{C2+2*e}, v{C2+2*e+1}")
        for e in range(4): Q(f"v_permlane16_swap_b32 v{U1O+e}, v{U1O+4+e}")
        Q(f"buffer_store_dwordx4 {vr(U1O)}, v{UA}, {sS}, s54 offen sc1", "u1s")
        Q(f"buffer_store_dwordx4 {vr(U1O+4)}, v{UA}, {sS}, s55 offen sc1", "u1s")
        FQ.add(Q)
        n_p1 = len(FQ)
        Q = Prog()
        SD, S7, KD, SG, AN = T, T + 2, T + 4, T + 5, 4
        Q(f"""v_and_b32 v1, 19, v0
v_bfe_u32 v2, v0, 2, 1
v_lshl_add_u32 v1, v2, 3, v1
v_bfe_u32 v2, v0, 3, 1
v_lshl_add_u32 v1, v2, 2, v1
s_lshl_b32 s3, s32, 1
s_add_u32 s3, s3, s33
s_lshl_b32 s3, s3, 5
v_add_u32 v1, s3, v1
v_xor_b32 v2, 32, v1
v_cvt_f32_u32 v1, v1
v_cvt_f32_u32 v2, v2
v_mul_f32 v{SD}, {f2h(1/448)}, v1
v_mul_f32 v{SD+1}, {f2h(1/448)}, v2
v_mul_f32 v{S7}, {f2h(1/64)}, v1
v_mul_f32 v{S7+1}, {f2h(1/64)}, v2
s_mul_i32 s3, s63, 112
s_mul_i32 s56, s33, 59
s_add_u32 s3, s3, s56
v_lshrrev_b32 v1, 5, v0
v_mad_u32_u24 v1, v1, 28, s3
v_cvt_f32_u32 v{KD}, v1
s_cmp_eq_u32 s33, 0
s_cselect_b32 s56, {f2h(56.0)}, {f2h(-55.0)}""".replace(f"s_cselect_b32 s56, {f2h(56.0)}, {f2h(-55.0)}", f"s_mov_b32 s57, {f2h(-55.0)}\ns_cselect_b32 s56, {f2h(56.0)}, s57\ns_cselect_b32 s57, s57, {f2h(56.0)}"))
        Q(f"""v_lshlrev_b32 v1, 31, v0
v_xor_b32 v{SG}, {f2h(-1.0)}, v1
s_cmp_eq_u32 s28, 0
s_cselect_b32 s58, -1, 0
s_mov_b32 s59, 0""")
        grp = Q.items
        def add_scc_safe(items):
            i = 0
            while i < len(items):
                j = i + 1
                if items[i].op.startswith("s_cmp"):
                    while j < len(items) and items[j].op.startswith("s_") and not items[j].op.startswith("s_cmp"): j += 1
                FQ.add(items[i:j], atomic=True); i = j
        p1 = [g[0] for g in FQ.q]; FQ.q = []
        add_scc_safe(p1); n_p1 = len(FQ)
        add_scc_safe(grp)
        Q = Prog()
        for u in range(7):
            for ms in range(2):
                o = FI + (u * 2 + ms) * 4
                Q(f"""v_mul_f32 v{AN}, v{KD}, v{SD+ms}
v_add_f32 v{AN+1}, v{AN}, v{S7+ms}
v_fma_f32 v{AN+2}, 2.0, v{S7+ms}, v{AN}
v_add_f32 v{AN+3}, v{AN+2}, v{S7+ms}""")
                for e in range(4): Q(f"v_cos_f32 v{8+e}, v{AN+e}\nv_sin_f32 v{12+e}, v{AN+e}")
                if u == 0: Q(f"v_cndmask_b32 v12, v12, v{SG}, s[58:59]")
                Q(f"""v_cvt_pk_bf16_f32 v{o}, v8, v9
v_cvt_pk_bf16_f32 v{o+1}, v10, v11
v_cvt_pk_bf16_f32 v{o+2}, -v12, -v13
v_cvt_pk_bf16_f32 v{o+3}, -v14, -v15""")
            if u < 6: Q(f"v_add_f32 v{KD}, s{56+(u&1)}, v{KD}")
        FQ.add(Q)
        HV, UV, GV, HFA, HFS, U2FA, LCA = T + 6, T + 8, T + 9, T + 10, T + 11, T + 12, T + 14
        Q = Prog()
        Q(f"""s_lshl_b32 s60, s29, 1
s_add_u32 s3, s60, s63
s_mul_i32 s3, s3, 229376
s_lshl_b32 s34, s30, 1
s_add_u32 s34, s34, s33
s_lshl_b32 s34, s34, 13
s_add_u32 s3, s3, s34
s_lshl_b32 s34, s33, 10
s_add_u32 s54, s3, s34
s_xor_b32 s55, s54, 1024
s_add_u32 s56, s54, 4096
s_add_u32 s57, s55, 4096
s_add_u32 s60, s60, s39
s_mul_i32 s3, s60, 229376
s_lshl_b32 s34, s4, 11
s_add_u32 s3, s3, s34
s_lshl_b32 s34, s63, 10
s_add_u32 s3, s3, s34
v_add_u32 v{HV}, s3, v32
v_xor_b32 v{HV+1}, 1024, v{HV}
v_and_b32 v1, 31, v0
s_lshl_b32 s3, s63, 1
v_xor_b32 v2, s3, v1
v_lshrrev_b32 v3, 5, v0
v_lshlrev_b32 v3, 4, v3
v_lshl_add_u32 v2, v2, 5, v3
s_mul_i32 s3, s60, 57344
s_mul_i32 s34, s28, 14336
s_add_u32 s3, s3, s34
s_add_u32 s3, s3, {U2_OFF}
v_add_u32 v{UV}, s3, v2
s_lshl_b32 s3, s60, 9
s_lshl_b32 s34, s63, 7
s_add_u32 s3, s3, s34
s_add_u32 s3, s3, {GZ_OFF}
v_lshl_add_u32 v{GV}, v1, 2, s3
v_min_u32 v1, 13, v0
s_lshl_b32 s3, s60, 1
s_add_u32 s3, s3, s63
s_lshl_b32 s3, s3, 8
s_add_u32 s3, s3, {HF_OFF}
v_lshl_add_u32 v{HFA}, v1, 2, s3
s_lshl_b32 s3, s61, 8
s_lshl_b32 s34, s30, 2
s_add_u32 s3, s3, s34
s_add_u32 s3, s3, {HF_OFF}
v_mov_b32 v2, s3
v_mov_b32 v3, {OOB}
v_cmp_eq_u32 s[36:37], 0, v0
s_mul_i32 s3, s29, {14*128}
s_add_u32 s3, s3, {U1F_OFF}
v_cndmask_b32 v{HFS}, v3, v2, s[36:37]
v_lshl_add_u32 v{LCA}, v1, 7, s3
v_lshl_add_u32 v1, v0, 1, s63
v_mov_b32 v2, s60
v_cmp_gt_u32 s[36:37], 16, v0
s_mov_b32 s3, {U2F_OFF}
s_nop 0
v_cndmask_b32 v1, v2, v1, s[36:37]
v_lshl_add_u32 v{U2FA}, v1, 7, s3""")
        FQ.add(Q)
        D = c.D; NB = 6
        def wread(q):
            Q = Prog(); ks, t = divmod(q, 4); ch = ks >> 1
            for rr in range(2):
                Q(f"ds_read_b64_tr_b16 {vr(FR+4*(q%NB)+2*rr,2)}, v{WR+t} offset:{((ch+1)&3)*16384+(ks&1)*2048+512*rr}", f"wr{q}")
            return Q
        sched = {k: [] for k in range(-1, 14)}
        def split(Q, first):
            it = Q.items
            return [it[:first]] + [[x] for x in it[first:]]
        dn = 0
        for k in range(-1, 10):
            g = [wload(k + 4).items]
            nd = (12 * (k + 2)) // 11 - dn
            for _ in range(nd): g.append(dload(dn).items); dn += 1
            sched[k] = g
        sched[10] = [dload(i).items for i in (12, 13, 20)]
        sched[11] = [dload(i).items for i in (14, 15, 21)]
        sched[12] = [dload(i).items for i in (16, 17, 22)]
        late = [dload(i).items for i in (18, 19, 23, 24, 25, 26, 27)]
        MQ = []
        def mq_fill(k):
            for g in sched[k]:
                pre = [x for x in g if x.cls != "vmem"]; vs = [x for x in g if x.cls == "vmem"]
                MQ.append(pre + vs[:1])
                for x in vs[1:]: MQ.append([x])
        for q in range(D): P.ext(wread(q))
        mq_fill(-1)
        slot = 0
        for q in range(112):
            ks, t = divmod(q, 4)
            P.wait(lg=f"wr{q}")
            for s in range(2):
                a = ACC + (2 * t + s) * 16
                P(f"v_mfma_f32_32x32x16_bf16 {vr(a,16)}, {vr(FR+4*(q%NB))}, {ar(XA(s,ks))}, {vr(a,16) if ks else 0}")
                bud = c.fill
                if s == 0:
                    qn = q + D
                    if qn % 8 == 0:
                        k = qn // 8 - 1
                        while MQ: P.ext(MQ.pop(0))
                        if k == c.pub_chunk:
                            assert sum(1 for x in P.items if getattr(x, "tag", None) == "u1s") == 2
                            P.wait(vm="u1s")
                        P.wait(vm=f"w{k+1}" if k < 13 else None, lg=0); P("s_barrier")
                        if k == c.pub_chunk: P(f"buffer_store_dwordx2 v[30:31], v{UF}, {sS}, 0 offen sc1")
                        if k == 9:
                            FQ.flush(P)
                            P(f"buffer_load_dwordx2 v[2:3], v{LCA}, {sS}, 0 offen sc1", "lc")
                        if k == 8:
                            Q = Prog(); Q.wait(vm="d7")
                            for i in range(8): Q.ext(dread(i, lambda r, i=i: ar(8*i+r, 2)))
                            FQ.q = [[x] for x in Q.items] + FQ.q
                        if k == 12:
                            P.wait(vm="lc")
                            self.check(P, "lc", f"buffer_load_dwordx2 v[2:3], v{LCA}, {sS}, 0 offen sc1", 2)
                            P("v_cmp_ne_u32 vcc, v31, v3" if not c.force_nonlocal else "v_cmp_eq_u32 vcc, v31, v31")
                        if k in (3, 7, 11): st(f"c{k}")
                        if k < 13: mq_fill(k)
                        slot = 0
                    if qn < 112: P.ext(wread(qn))
                    bud -= 1
                elif MQ and (slot % 2 == 1):
                    g = MQ.pop(0); P.ext(g); bud -= len(g) - 1
                slot += 1
                if q < 6: bud += 2
                FQ.take(P, bud)
        FQ.flush(P)
        st("Adone")
        LT = Filler()
        for g in late: LT.add(g, atomic=True)
        E = 16
        for t in range(4):
            for s in range(2):
                a = ACC + (2 * t + s) * 16; o = 4 + 4 * ((2 * t + s) % 3)
                for e in range(8): P(f"v_mul_f32 v{E+e}, {f2h(-1.4426950408889634)}, v{a+e}")
                for e in range(8): P(f"v_exp_f32 v{E+e}, v{E+e}")
                LT.take(P, 1)
                for e in range(8): P(f"v_add_f32 v{E+e}, 1.0, v{E+e}")
                for e in range(8): P(f"v_rcp_f32 v{E+e}, v{E+e}")
                for e in range(8): P(f"v_mul_f32 v{a+e}, v{a+e}, v{a+8+e}")
                if (t, s) == (3, 0):
                    P.wait(vm="hs1"); self.lstore(P, f"buffer_store_dword v30, v{HFS}, {sS}, 0 offen")
                for e in range(8): P(f"v_mul_f32 v{a+e}, v{a+e}, v{E+e}")
                for e in range(4): P(f"v_cvt_pk_bf16_f32 v{o+e}, v{a+2*e}, v{a+2*e+1}")
                self.lstore(P, f"buffer_store_dwordx4 {vr(o)}, v32, {sS}, s{54+s+2*(t>>1)} offen offset:{2048*(t&1)}", f"hs{t}")
        LT.flush(P)
        st("epi")
        hf = lambda half: f"buffer_load_dword v1, v{HFA}, {sS}, 0 offen offset:{128*half} sc1"
        P(hf(0), "hf0")
        RB = 192; RS = 4
        P(f"""v_and_b32 v2, 31, v0
v_cvt_f32_u32 v2, v2
v_mul_f32 v2, {f2h(1/32)}, v2
v_lshrrev_b32 v3, 5, v0
v_cvt_f32_u32 v3, v3
v_mul_f32 v3, v3, v2
s_mov_b32 s58, -1""")
        for k in range(8): P(f"v_fmamk_f32 v{RB+2*k+1}, v2, {f2h(2.0*k)}, v3")
        for k in range(8): P(f"v_cos_f32 v{RB+2*k}, v{RB+2*k+1}\nv_sin_f32 v{RB+2*k+1}, v{RB+2*k+1}")
        P(f"v_cndmask_b32 v{RB+1}, v{RB+1}, v{SG}, s[58:59]")
        P.wait(vm="hf0")
        self.lstore(P, f"buffer_store_dword v30, v{HFS}, {sS}, 0 offen offset:128")
        self.check(P, "hf0", hf(0), 1)
        st("hf0")
        HR = lambda i, ns: 64 + (i % 16) * 8 + 4 * ns
        UR = lambda u, t: 192 + (2 * u + t) * 4
        EZ = 20; OMG = 22
        def hload(i):
            Q = Prog(); Q(f"s_mov_b32 s7, {ksoff(i)*2048}")
            for ns in range(2): Q(f"buffer_load_dwordx4 {ar(HR(i,ns))}, v{HV+ns}, {sS}, s7 offen sc1", f"h{i}")
            return Q
        u2f = f"buffer_load_dword v2, v{U2FA}, {sS}, 0 offen sc1"
        BQ = []
        for i in range(28):
            Q = Prog()
            if i == 10: Q(hf(1), "hf1")
            if i == 14: Q.wait(vm="hf1"); self.check(Q, "hf1", hf(1), 1)
            if i == 24: Q(u2f, "u2f")
            Q.ext(hload(i)); BQ.append(Q)
        Q = Prog(); Q.wait(vm="u2f"); self.check(Q, "u2f", u2f, 2)
        Q(f"v_xor_b32 v3, 128, v{GV}")
        Q(f"buffer_load_dword v{EZ}, v{GV}, {sS}, 0 offen sc1", "gz")
        Q(f"buffer_load_dword v{EZ+1}, v3, {sS}, 0 offen sc1", "gz")
        Q(f"buffer_load_dword v{OMG}, v{GV}, {sS}, 0 offen offset:256 sc1", "gz")
        for u in range(7):
            if u % 2 == 0: Q(f"s_mov_b32 s7, {u*2048}")
            for t in range(2): Q(f"buffer_load_dwordx4 {ar(UR(u,t))}, v{UV}, {sS}, s7 offen offset:{(u&1)*2048+1024*t} sc1", f"u{u}")
            BQ.append(Q); Q = Prog()
        LA = 5
        for _ in range(LA): P.ext(BQ.pop(0))
        DF = lambda i: (lambda r: vr(FR + (i % 3) * 8 + r, 2))
        for i in range(28):
            P.wait(vm=f"h{i}", lg=f"dr{i}")
            rd = []
            if 8 <= i + 2 < 28:
                Q = Prog(); Q.wait(vm=f"d{i+2}"); Q.ext(dread(i + 2, DF(i + 2))); rd = Q.items
            mem = BQ.pop(0).items if BQ else []
            for m in range(4):
                ms, ns = m & 1, m >> 1
                a = ACC + 16 * m
                A = ar(8 * i + 4 * ms) if i < 8 else vr(FR + (i % 3) * 8 + 4 * ms)
                P(f"v_mfma_f32_32x32x16_bf16 {vr(a,16)}, {A}, {ar(HR(i,ns))}, {vr(a,16) if i else 0}")
                if m == 0: P.ext(mem)
                if m == 1: P.ext(rd[:3])
                if m == 2: P.ext(rd[3:])
            if i == 13: st("B13")
        st("B27")
        while BQ: P.ext(BQ.pop(0))
        P.wait(vm="gz")
        for ns in range(2):
            for k in range(8):
                P(f"v_mul_f32 v2, v{RB+2*k}, v{EZ+ns}\nv_mul_f32 v3, v{RB+2*k+1}, v{EZ+ns}\nv_cvt_pk_bf16_f32 v{RS+8*ns+k}, v2, -v3")
        G = lambda t, ms: 192 + (2 * t + ms) * 16
        for u in range(7):
            P.wait(vm=f"u{u}")
            for t in range(2):
                for ms in range(2):
                    P(f"v_mfma_f32_32x32x16_bf16 {vr(G(t,ms),16)}, {ar(UR(u,t))}, {vr(FI+(2*u+ms)*4)}, {vr(G(t,ms),16) if u else 0}")
        RA = 24
        P(f"v_add_u32 v{RA+3}, s5, v32")
        for s in range(1, 4):
            P(f"s_xor_b32 s3, s28, {s}\ns_mul_i32 s3, s3, 24576\nv_add_u32 v{RA+s-1}, s3, v32")
        P(f"""v_and_b32 v1, 31, v0
v_mul_u32_u24 v1, 57344, v1
v_lshrrev_b32 v2, 5, v0
v_lshl_add_u32 v1, v2, 4, v1
s_lshl_b32 s3, s60, 1
s_add_u32 s3, s3, s63
s_mul_i32 s3, s3, 896
s_lshl_b32 s7, s32, 1
s_add_u32 s7, s7, s33
s_lshl_b32 s7, s7, 6
s_add_u32 s3, s3, s7
v_add_u32 v28, s3, v1""")
        GO = lambda t, ms, ns: FI + ((t * 2 + ms) * 2 + ns) * 4
        for t in range(2):
            for ms in range(2):
                for ns in range(2):
                    for i in range(4):
                        P(f"v_cvt_pk_bf16_f32 v{GO(t,ms,ns)+i}, v{G(t,ms)+4*i+2*ns}, v{G(t,ms)+4*i+2*ns+1}")
        for m in (3, 2, 1, 0):
            ms, ns = m & 1, m >> 1
            for t in range(2):
                P(f"v_mfma_f32_32x32x16_bf16 {vr(ACC+16*m,16)}, {vr(GO(t,ms,ns))}, {vr(RS+8*ns+4*t)}, {vr(ACC+16*m,16)}")
        st("P3")
        for s in (3, 2, 1):
            for q in range(4): P(f"ds_write_b128 v{RA+3}, {vr(ACC+16*s+4*q)} offset:{(s-1)*4096+1024*q}")
        P.wait(lg=0); P("s_barrier")
        for q in range(4):
            for s in range(1, 4): P(f"ds_read_b128 {vr(192+16*(s-1)+4*q)}, v{RA+s-1} offset:{(s-1)*4096+1024*q}", f"t{q}")
        P(f"s_or_b32 s3, s2, s28\ns_cmp_eq_u32 s3, 0\ns_mov_b32 s7, {OOB}\ns_cselect_b32 s3, {EP_OFF}, s7\nv_mov_b32 v1, s3")
        P(f"buffer_store_dword v30, v1, {sS}, 0 offen sc1")
        for q in range(4):
            P.wait(lg=f"t{q}")
            for e in range(4):
                r = 4 * q + e
                P(f"v_add_f32 v{ACC+r}, v{ACC+r}, v{192+r}\nv_add_f32 v{208+r}, v{208+r}, v{224+r}")
            for e in range(4):
                r = 4 * q + e
                P(f"v_add_f32 v{ACC+r}, v{ACC+r}, v{208+r}")
            for e in range(4):
                r = 4 * q + e
                P(f"v_mul_f32 v{ACC+r}, v{ACC+r}, v{OMG}")
            for e in range(2): P(f"v_cvt_pk_bf16_f32 v{4+2*q+e}, v{ACC+4*q+2*e}, v{ACC+4*q+2*e+1}")
            if q & 1: P(f"buffer_store_dwordx4 {vr(4+4*(q>>1))}, v28, {sO}, 0 offen offset:{32*(q>>1)}")
        st("end")
        self.dump_stamps(P, "main")
        P("s_endpgm")
        return P

    def spare(self):
        c = self.c; P = Prog(); st = lambda n: self.stamp(P, "spare", n)
        P("L_spare:")
        P("""s_lshl_b32 s29, s33, 2
s_add_u32 s29, s29, s34
s_sub_u32 s29, s29, 28
s_lshr_b32 s30, s29, 1
s_and_b32 s39, s29, 1
v_and_b32 v1, 15, v0
v_lshrrev_b32 v2, 4, v0""")
        P(f"""s_cmp_eq_u32 s30, 0
s_cselect_b32 s42, {(16-1024) & 0xffffffff}, s30
s_mov_b32 s41, s30
s_cmp_ge_u32 s28, 2
s_cselect_b32 s40, s42, s41""")
        RAW = 160; NY = 224; CO = 8 - 8
        WA = 4
        P(f"""s_lshl_b32 s3, s28, 9
s_add_u32 s3, s3, s40
v_lshl_add_u32 v3, v2, 7, s3
s_mul_i32 s7, s39, 224
v_mad_u32_u24 v12, v1, 14, s7""")
        for r in range(4):
            P(f"""v_add_u32 v13, {32*r}, v3
v_sub_u32 v14, 2048, v13""")
            if r == 0: P("v_cmp_eq_u32 s[44:45], 0, v13\nv_mov_b32 v15, 1024\ns_nop 0\nv_cndmask_b32 v14, v14, v15, s[44:45]")
            P(f"v_mul_u32_u24 v{WA+r}, 450, v13\nv_mul_u32_u24 v{WA+4+r}, 450, v14")
        P(f"""s_and_b32 s3, s28, 1
s_lshl_b32 s3, s3, 4
v_add_u32 v13, s3, v1
v_mul_u32_u24 v13, 57344, v13
v_lshlrev_b32 v14, 4, v2
s_lshr_b32 s3, s28, 1
s_lshl_b32 s7, s29, 1
s_add_u32 s3, s3, s7
s_mul_i32 s3, s3, 896
v_add3_u32 v13, v13, v14, s3
v_mov_b32 v15, {EP_OFF}""")
        P("s_waitcnt lgkmcnt(0)")
        self.srd(P, 8, 64, 1835008); self.srd(P, 12, 66, 921600); self.srd(P, 16, 68, 921600)
        self.srd(P, 20, 82, WS_SIZE); self.srd(P, 24, 78, 896)
        P(f"buffer_load_dword v30, v15, {sS}, 0 offen sc1", "ep")
        rw = lambda r, k: RAW + (r * 4 + k) * 4
        for r in range(4):
            for k in range(4):
                P(f"buffer_load_short_d16_hi v{NY+4*r+k}, v{WA+r+4*(k>>1)}, {sD if k&1 else sW}, 0 offen offset:448", "ny")
        for r in range(8): P(f"v_add_u32 v{WA+r}, v{WA+r}, v12")
        LQ = []
        for r in range(4):
            for k in range(4):
                LQ.append(Ins(f"buffer_load_dwordx4 {vr(rw(r,k))}, v{WA+r+4*(k>>1)}, {sD if k&1 else sW}, 0 offen", "raw"))
        GX = 128; GW = 184
        for ks in range(14):
            LQ.append(Ins(f"buffer_load_dwordx4 {ar(GX+4*ks)}, v13, {sX}, 0 offen offset:{64*ks}", "gx"))
            LQ.append(Ins(f"buffer_load_dwordx4 {ar(GW+4*ks)}, v14, {sO}, 0 offen offset:{64*ks}", "gx"))
        def lq(n):
            for _ in range(n):
                if LQ: P.items.append(LQ.pop(0))
        if c.sp_test:
            st("pre"); P.wait(vm=0); st("ny")
            lq(16); P.wait(vm=0); st("raw")
            lq(99); P.wait(vm=0); st("gl")
        lq(8)
        T = 33
        P(f"""s_lshl_b32 s3, s28, 9
s_add_u32 s3, s3, s40
v_lshl_add_u32 v3, v1, 5, s3
v_cmp_eq_u32 s[46:47], 0, v3
v_cvt_f32_u32 v3, v3
v_mul_f32 v{T}, {f2h(1/2048)}, v3
v_lshlrev_b32 v3, 2, v2
v_cvt_f32_u32 v{T+2}, v3
v_mul_f32 v{T+1}, v{T+2}, v{T}
s_cmp_eq_u32 s30, 0
s_cselect_b32 s48, 0xffff, -1
s_cselect_b32 s49, 16, 0
s_cmp_ge_u32 s28, 2
s_cselect_b32 s49, s49, 0
v_mov_b32 v{T+3}, 0x3f80
v_mov_b32 v{T+4}, 0xbf80""")
        A0 = 40
        for u in range(4):
            for e in range(4): P(f"v_fmamk_f32 v{A0+e}, v{T}, {f2h(float(16*u+e))}, v{T+1}")
            for e in range(4): P(f"v_cos_f32 v{A0+4+e}, v{A0+e}\nv_sin_f32 v{A0+e}, v{A0+e}")
            lq(2)
            for e in range(4):
                P(f"v_cvt_pk_bf16_f32 v{A0+8+e}, v{A0+4+e}, v{A0+e}\nv_cvt_pk_bf16_f32 v{A0+12+e}, -v{A0+e}, v{A0+4+e}")
            for e in range(8): P(f"v_and_b32 v{A0+8+e}, s48, v{A0+8+e}")
            lq(2)
            for e in range(8): P(f"v_lshlrev_b32 v{A0+8+e}, s49, v{A0+8+e}")
            for e in range(4): P(f"v_cndmask_b32 v{A0+12+e}, v{A0+12+e}, v{T+3+(e&1)}, s[46:47]")
            for e in range(4): P(f"v_accvgpr_write_b32 a{4*u+e}, v{A0+8+e}\nv_accvgpr_write_b32 a{16+4*u+e}, v{A0+12+e}")
            lq(1)
        P(f"""s_lshl_b32 s3, s28, 4
v_add_u32 v3, s3, v1
v_cvt_f32_u32 v3, v3
v_mul_f32 v{T}, {f2h(1/2048)}, v3
v_lshl_add_u32 v3, v2, 7, s41
v_cmp_eq_u32 s[46:47], 0, v3
v_cvt_f32_i32 v{T+1}, v3
v_lshl_add_u32 v3, v2, 7, s42
v_cvt_f32_i32 v{T+2}, v3
v_mul_f32 v{T+1}, v{T+1}, v{T}
v_mul_f32 v{T+2}, v{T+2}, v{T}
v_lshlrev_b32 v3, 31, v0
v_xor_b32 v{T+3}, 0x3f803f80, v3
s_cmp_eq_u32 s30, 0
s_cselect_b32 s50, -1, 0
s_cselect_b32 s51, -1, 0""")
        for u in range(4):
            for e in range(4): P(f"v_fmamk_f32 v{A0+e}, v{T}, {f2h(float(512*u+32*e))}, v{T+1+(u>>1)}")
            for e in range(4): P(f"v_cos_f32 v{A0+4+e}, v{A0+e}\nv_sin_f32 v{A0+e}, v{A0+e}")
            lq(2)
            for e in range(4):
                P(f"v_cvt_pk_bf16_f32 v{A0+8+e}, v{A0+4+e}, -v{A0+e}\nv_cvt_pk_bf16_f32 v{A0+12+e}, v{A0+e}, v{A0+4+e}")
            if u == 0: P(f"v_cndmask_b32 v{A0+8}, v{A0+8}, v{T+3}, s[46:47]")
            for e in range(4):
                if u < 2: P(f"v_cndmask_b32 v{A0+12+e}, v{A0+12+e}, 0, s[50:51]")
                else: P(f"v_cndmask_b32 v{A0+12+e}, v{A0+12+e}, v{A0+8+e}, s[50:51]\nv_cndmask_b32 v{A0+8+e}, v{A0+8+e}, 0, s[50:51]")
            lq(2)
            for e in range(4): P(f"v_accvgpr_write_b32 a{32+4*u+e}, v{A0+8+e}\nv_accvgpr_write_b32 a{48+4*u+e}, v{A0+12+e}")
        lq(99)
        st("trig")
        P.wait(vm="raw")
        self.tag(P)
        CB = lambda b: 48 + 16 * b
        P(f"v_mov_b32 v3, 0xffff0000")
        X2 = lambda b: (4 + 4 * b) if b < 6 else 44
        SB = 34
        U0 = 240
        def coef(dst, x2, src, r):
            P(f"""v_add_f32 v{dst+r}, v{src(0)}, v{src(2)}
v_sub_f32 v{dst+4+r}, v{src(1)}, v{src(3)}
v_sub_f32 v{dst+8+r}, v{src(0)}, v{src(2)}
v_add_f32 v{dst+12+r}, v{src(1)}, v{src(3)}""")
            if r == 0:
                P(f"""v_cndmask_b32 v{x2}, v{dst}, v{src(2)}, s[44:45]
v_cndmask_b32 v{x2+2}, v{dst+12}, v{src(3)}, s[44:45]
v_cndmask_b32 v{dst}, v{dst}, v{src(0)}, s[44:45]
v_cndmask_b32 v{dst+12}, v{dst+12}, v{src(1)}, s[44:45]
v_cndmask_b32 v{dst+4}, v{dst+4}, 0, s[44:45]
v_cndmask_b32 v{dst+8}, v{dst+8}, 0, s[44:45]""")
            if r == 1: P(f"v_mov_b32 v{x2+1}, v{dst+1}\nv_mov_b32 v{x2+3}, v{dst+13}")
        for b in range(7):
            for r in range(4):
                for k in range(4):
                    s = rw(r, k) + (b >> 1)
                    P(f"v_and_b32 v{U0+k}, v3, v{s}" if b & 1 else f"v_lshlrev_b32 v{U0+k}, 16, v{s}")
                coef(CB(b), X2(b), lambda k: U0 + k, r)
        for r in range(4): coef(160, 176, lambda k: NY + 4 * r + k, r)
        P(f"v_lshl_add_u32 v3, v1, 1, s39\nv_cmp_eq_u32 s[46:47], 0, v3\nv_mov_b32 v{U0}, 1.0\ns_nop 0\nv_cndmask_b32 v{U0+1}, v{U0}, 0.5, s[46:47]\nv_cndmask_b32 v{U0+2}, v{U0}, 0, s[46:47]")
        for k in range(8): P(f"v_cndmask_b32 v{SB+k}, v{CB(0)+k}, v{160+k}, s[46:47]")
        for k in range(2): P(f"v_cndmask_b32 v{SB+8+k}, v{X2(0)+k}, v{176+k}, s[46:47]")
        for rg in list(range(SB, SB + 10)) + list(range(CB(0), CB(0) + 8)) + [X2(0), X2(0) + 1]:
            P(f"v_mul_f32 v{rg}, v{rg}, v{U0+1}")
        for rg in list(range(CB(0) + 8, CB(0) + 16)) + [X2(0) + 2, X2(0) + 3]:
            P(f"v_cndmask_b32 v{rg}, v{rg}, 0, s[46:47]")
        st("coef")
        P.wait(vm="gx")
        for ks in range(14):
            P(f"v_mfma_f32_16x16x32_bf16 v[160:163], {ar(GW+4*ks)}, {ar(GX+4*ks)}, {'v[160:163]' if ks else 0}")
        FA, DA, TR, YW, SA, FS = 244, 246, 248, 250, 251, 252
        P(f"""v_lshrrev_b32 v3, 2, v0
v_mul_u32_u24 v3, {14*128}, v3
v_and_b32 v{FA}, 3, v0
v_lshl_add_u32 v3, v{FA}, 7, v3
s_mul_i32 s3, s39, {7*128}
s_add_u32 s3, s3, {U1F_OFF}
v_add_u32 v{FA}, s3, v3
v_lshrrev_b32 v3, 5, v0
v_lshlrev_b32 v3, 5, v3
v_xor_b32 v3, v3, v32
s_mul_i32 s3, s30, 14
s_mul_i32 s7, s39, 7
s_add_u32 s3, s3, s7
s_lshl_b32 s3, s3, 13
s_lshl_b32 s4, s28, 11
s_add_u32 s3, s3, s4
s_add_u32 s3, s3, {U1_OFF}
v_add_u32 v{DA}, s3, v3
v_bfe_u32 v3, v0, 2, 2
v_lshl_add_u32 v3, v2, 3, v3
v_lshlrev_b32 v3, 6, v3
v_and_b32 v{TR}, 3, v0
v_lshl_add_u32 v3, v{TR}, 3, v3
v_and_b32 v{TR}, 1, v2
v_lshl_add_u32 v{TR}, v{TR}, 5, v3
v_xor_b32 v{TR+1}, 32, v{TR}
v_add_u32 v33, 65536, v32
v_add_u32 v{YW}, s4, v33
v_lshrrev_b32 v3, 1, v1
v_mul_u32_u24 v3, 57344, v3
v_and_b32 v{SA}, 1, v0
v_lshl_add_u32 v3, v{SA}, 6, v3
v_lshl_add_u32 v3, v2, 4, v3
s_mul_i32 s3, s28, {8*57344}
s_lshl_b32 s7, s7, 12
s_add_u32 s3, s3, s7
s_lshl_b32 s7, s30, 7
s_add_u32 s3, s3, s7
s_add_u32 s3, s3, {U2_OFF}
v_add_u32 v{SA}, s3, v3
s_lshl_b32 s3, s29, 7
s_add_u32 s3, s3, {U2F_OFF}
s_cmp_eq_u32 s28, 0
s_cselect_b32 s3, s3, {OOB}
v_mov_b32 v3, s3
v_mov_b32 v{FS}, {OOB}
v_cmp_eq_u32 s[46:47], 0, v0
s_lshl_b32 s3, s29, 9
s_lshl_b32 s7, s28, 6
v_cndmask_b32 v{FS}, v{FS}, v3, s[46:47]
s_add_u32 s3, s3, s7
s_add_u32 s3, s3, {GZ_OFF}
v_and_b32 v3, 1, v2
v_cmp_eq_u32 s[46:47], 1, v3
v_lshlrev_b32 v3, 8, v3
v_lshl_add_u32 v3, v1, 2, v3
v_add_u32 v3, s3, v3
v_min_f32 v160, {f2h(40.0)}, v160
v_max_f32 v160, {f2h(-40.0)}, v160
v_mul_f32 v160, {f2h(1.4426950408889634)}, v160
v_exp_f32 v160, v160
v_add_f32 v161, 1.0, v160
v_rcp_f32 v161, v161
v_mul_f32 v160, {f2h(2.0/(2048*448))}, v160
v_cndmask_b32 v160, v160, v161, s[46:47]
s_mov_b32 exec_hi, 0""")
        P(f"buffer_store_dword v160, v3, {sS}, 0 offen sc1")
        P("s_mov_b32 exec_hi, -1")
        st("gate")
        P(f"""s_cmp_lg_u32 s28, 0
s_cbranch_scc1 L_u1ok
s_mov_b32 s38, 0
L_u1poll:
buffer_load_dword v160, v{FA}, {sS}, 0 offen sc1
buffer_load_dword v161, v{FA}, {sS}, 0 offen offset:384 sc1
s_add_u32 s38, s38, 1
s_waitcnt vmcnt(0)
v_cmp_ne_u32 s[36:37], v30, v160
v_cmp_ne_u32 s[46:47], v30, v161
s_nop 1
s_or_b64 s[36:37], s[36:37], s[46:47]
s_cbranch_scc0 L_u1ok
s_sleep 4
s_cmp_lt_u32 s38, {SPIN_MAX}
s_cbranch_scc1 L_u1poll
L_u1ok:""")
        P.wait(vm=0); P("s_barrier")
        st("u1ok")
        for b in range(7):
            P(f"s_add_u32 m0, s4, {8192*b}\ns_mov_b32 s7, {8192*b}")
            for k in range(2): P(f"buffer_load_dwordx4 v{DA}, {sS}, s7 offen offset:{1024*k} sc1 lds", f"t{b}")
        TF = 64; YF = 96
        Z = 160; Y = 176; YO = 192; V = 200; VO = 216
        for b in range(8):
            P.wait(vm=f"t{b}" if b < 7 else None, lg=0); P("s_barrier")
            if b == 0: st("t0")
            if b < 7:
                for u in range(4):
                    for pq in range(2):
                        for rr in range(2):
                            P(f"ds_read_b64_tr_b16 {ar(TF+(2*u+pq)*4+2*rr,2)}, v{TR+pq} offset:{8192*b+2048*u+256*rr}", f"tr{u}")
                for u in range(4):
                    P.wait(lg=f"tr{u}")
                    for pq in range(2):
                        for ri in range(2):
                            z = Z + (2 * pq + ri) * 4
                            P(f"v_mfma_f32_16x16x32_bf16 {vr(z)}, {ar(16*ri+4*u)}, {ar(TF+(2*u+pq)*4)}, {vr(z) if u else 0}")
                    if b > 0:
                        for pq in range(2): P(f"ds_read_b128 {ar(YF+(2*u+pq)*4)}, v33 offset:{8192*((b-1)&1)+2048*u+1024*pq}", f"y{u}")
            elif b > 0:
                for u in range(4):
                    for pq in range(2): P(f"ds_read_b128 {ar(YF+(2*u+pq)*4)}, v33 offset:{8192*((b-1)&1)+2048*u+1024*pq}", f"y{u}")
            PW = Filler()
            if b < 7:
                Q = Prog(); cb_ = CB(b)
                Pr, Pi, Qr, Qi = Z, Z + 4, Z + 8, Z + 12
                ng = "neg_lo:[1,0,0] neg_hi:[1,0,0]"
                for hh in (0, 2):
                    p2 = lambda x: vr(x + hh, 2)
                    Sr, Si, Dr, Di = p2(cb_), p2(cb_ + 4), p2(cb_ + 8), p2(cb_ + 12)
                    Sr2, Di2 = (vr(X2(b), 2), vr(X2(b) + 2, 2)) if hh == 0 else (Sr, Di)
                    Sbr, Sbi, Sbr2 = Sr, Si, Sr2
                    if b == 0: Sbr, Sbi = p2(SB), p2(SB + 4); Sbr2 = vr(SB + 8, 2) if hh == 0 else Sbr
                    o = [p2(Y + 4 * k) for k in range(4)]
                    Q(f"""v_pk_mul_f32 {o[0]}, {Sr}, {p2(Pr)}
v_pk_mul_f32 {o[1]}, {Si}, {p2(Pr)}
v_pk_mul_f32 {o[2]}, {Sbr}, {p2(Qr)}
v_pk_mul_f32 {o[3]}, {Sbi}, {p2(Qr)}
v_pk_fma_f32 {o[0]}, {Si}, {p2(Pi)}, {o[0]} {ng}
v_pk_fma_f32 {o[1]}, {Sr2}, {p2(Pi)}, {o[1]}
v_pk_fma_f32 {o[2]}, {Sbi}, {p2(Qi)}, {o[2]} {ng}
v_pk_fma_f32 {o[3]}, {Sbr2}, {p2(Qi)}, {o[3]}
v_pk_fma_f32 {o[0]}, {Di}, {p2(Qr)}, {o[0]} {ng}
v_pk_fma_f32 {o[1]}, {Dr}, {p2(Qr)}, {o[1]}
v_pk_fma_f32 {o[2]}, {Di}, {p2(Pr)}, {o[2]}
v_pk_fma_f32 {o[3]}, {Dr}, {p2(Pr)}, {o[3]} {ng}
v_pk_fma_f32 {o[0]}, {Dr}, {p2(Qi)}, {o[0]} {ng}
v_pk_fma_f32 {o[1]}, {Di2}, {p2(Qi)}, {o[1]} {ng}
v_pk_fma_f32 {o[2]}, {Dr}, {p2(Pi)}, {o[2]}
v_pk_fma_f32 {o[3]}, {Di2}, {p2(Pi)}, {o[3]}""")
                for pq in range(2):
                    for r in range(4): Q(f"v_cvt_pk_bf16_f32 v{YO+4*pq+r}, v{Y+8*pq+r}, v{Y+8*pq+4+r}")
                    Q(f"ds_write_b128 v{YW}, {vr(YO+4*pq)} offset:{8192*(b&1)+1024*pq}")
                PW.add(Q)
            if b > 0:
                n = 0
                for u in range(4):
                    P.wait(lg=f"y{u}")
                    for pq in range(2):
                        for j2 in range(2):
                            v = V + (2 * j2 + pq) * 4
                            P(f"v_mfma_f32_16x16x32_bf16 {vr(v)}, {ar(YF+(2*u+pq)*4)}, {ar(32+16*j2+4*u)}, {vr(v) if u else 0}")
                            n += 1
                            if n > 4: PW.take(P, 2)
            PW.flush(P)
            if b > 0:
                for k in range(8): P(f"v_cvt_pk_bf16_f32 v{VO+k}, v{V+2*k}, v{V+2*k+1}")
                for e in range(4): P(f"v_permlane32_swap_b32 v{VO+e}, v{VO+4+e}")
                P(f"s_mov_b32 s7, {4096*(b-1)}")
                for kk in range(2): P(f"buffer_store_dwordx4 {vr(VO+4*kk)}, v{SA}, {sS}, s7 offen offset:{2048*kk} sc1")
        st("p2")
        P.wait(vm=0); P("s_barrier")
        P(f"buffer_store_dword v30, v{FS}, {sS}, 0 offen sc1")
        st("end")
        self.dump_stamps(P, "spare")
        P("L_exit:\ns_endpgm")
        return P

    def build(self):
        pro = self.prologue(); m = self.main(); s = self.spare()
        M = Prog(); M.ext(pro); M.ext(m)
        mi, n1 = finish(M)
        si, n2 = finish(s)
        hdr = open("gated_mix__spectral_gfnet__swiglu_ffn__prompt.s.ref").read().split("; Override")[0] if False else ""
        out = ["; @launch grid=(256,1,1) block=(256,1,1) lds=163840",
               '.amdgcn_target "amdgcn-amd-amdhsa--gfx950"', ".text", f".globl {KNAME}", ".p2align 8",
               f".type {KNAME},@function", f"{KNAME}:", text(mi), text(si)] + self.ool
        out.append(f""".section .rodata,"a"
.p2align 6
.amdhsa_kernel {KNAME}
  .amdhsa_next_free_vgpr 512
  .amdhsa_next_free_sgpr 102
  .amdhsa_accum_offset 256
  .amdhsa_group_segment_fixed_size 0
  .amdhsa_kernarg_size 88
  .amdhsa_user_sgpr_count 2
  .amdhsa_user_sgpr_kernarg_segment_ptr 1
  .amdhsa_system_sgpr_workgroup_id_x 1
.end_amdhsa_kernel
""")
        sys.stderr.write(f"main {len(mi)} ins ({n1} pad), spare {len(si)} ins ({n2} pad)\n")
        return "\n".join(out)

if __name__ == "__main__":
    cfg = Cfg(); outp = sys.argv[1]
    for a in sys.argv[2:]:
        k, v = a.split("="); setattr(cfg, k, type(getattr(Cfg, k))(int(v)))
    g = Gen(cfg); s = g.build()
    if cfg.stamps: s = s.replace("\n", "\n; stamps " + repr(g.stn) + "\n", 1)
    open(outp, "w").write(s)
```
